```python
import torch

def _softmax(x, axis=-1):
    return torch.softmax(x, dim=axis)
def _gelu(x):
    return torch.nn.functional.gelu(x, approximate="tanh")
def _silu(x):
    return torch.nn.functional.silu(x)
def _sigmoid(x):
    return torch.sigmoid(x)
def _layernorm(x, axis=-1, eps=1e-5):
    m = x.mean(dim=axis, keepdim=True)
    v = x.var(dim=axis, keepdim=True, unbiased=False)
    return (x - m) / torch.sqrt(v + eps)
def _scatter_add(tgt, idx, src, axis=0):
    return tgt.clone().index_add_(axis, idx, src)
def _segment_sum(src, seg, n):
    out = torch.zeros((n,) + src.shape[1:], dtype=src.dtype)
    return out.index_add_(0, seg, src)
def _pad(x, pw):
    flat = tuple(v for pair in reversed(pw) for v in pair)
    return torch.nn.functional.pad(x, flat)

kernel_name = 'gated_mix__compressed_kv_cla__dense_activation_silu__decode'

def setup_inputs():

    _w = (lambda a: (lambda t: t.to(torch.bfloat16) if t.is_floating_point() else t)(torch.as_tensor(a)))
    def _A_setup():
        B, H, Sq, Sk, D, M = 1, 32, 1, 8192, 128, 512
        Dc = 4 * D
        return {
            "x": _w((lambda *s: torch.randn(*s, dtype=torch.bfloat16) * 0.05)(B, Sq, M)),
            "c_kv": _w((lambda *s: torch.randn(*s, dtype=torch.bfloat16) * 0.8)(B, Sk, Dc)),
            "w_q": _w((lambda *s: torch.randn(*s, dtype=torch.bfloat16) * 6.4)(M, H, D) * (M ** -0.5)),
            "w_uk": _w((lambda *s: torch.randn(*s, dtype=torch.bfloat16) * 6.4)(Dc, H, D) * (Dc ** -0.5)),
            "w_uv": _w((lambda *s: torch.randn(*s, dtype=torch.bfloat16) * 0.8)(Dc, H, D) * (Dc ** -0.5)),
            "w_o": _w((lambda *s: torch.randn(*s, dtype=torch.bfloat16) * 0.8)(H, D, M) * ((H * D) ** -0.5)),
        }
    _A_in = _A_setup()

    def _B_setup():
        B, S, D, F = 1, 1, 512, 1376
        return {
            "x": _w((lambda *s: torch.randn(*s, dtype=torch.bfloat16) * 0.05)(B, S, D)),
            "w1": _w((lambda *s: torch.randn(*s, dtype=torch.bfloat16) * 12.8)(D, F) * (D ** -0.5)),
            "w2": _w((lambda *s: torch.randn(*s, dtype=torch.bfloat16) * 0.1)(F, D) * (F ** -0.5)),
        }
    _B_in = _B_setup()

    return {
        "A_x": _A_in["x"],
        "A_c_kv": _A_in["c_kv"],
        "A_w_q": _A_in["w_q"],
        "A_w_uk": _A_in["w_uk"],
        "A_w_uv": _A_in["w_uv"],
        "A_w_o": _A_in["w_o"],
        "B_x": _B_in["x"],
        "B_w1": _B_in["w1"],
        "B_w2": _B_in["w2"],
        "gate_w": _w((lambda *s: torch.randn(*s, dtype=torch.bfloat16) * 0.05)(512) * 16.0),
    }

def reference(A_x, A_c_kv, A_w_q, A_w_uk, A_w_uv, A_w_o, B_x, B_w1, B_w2, gate_w):
    def _A_ref(x, c_kv, w_q, w_uk, w_uv, w_o):
        B, Sq, M = x.shape[0], x.shape[1], x.shape[2]
        Sk = c_kv.shape[1]
        H, D = w_q.shape[1], w_q.shape[2]
        q = torch.einsum("bqm,mhd->bhqd", x, w_q)
        k = torch.einsum("bkc,chd->bhkd", c_kv, w_uk)
        v = torch.einsum("bkc,chd->bhkd", c_kv, w_uv)
        scores = torch.einsum("bhqd,bhkd->bhqk", q, k) * (D ** -0.5)
        off = Sk - Sq
        qi = torch.arange(Sq)[:, None]
        kj = torch.arange(Sk)[None, :]
        cmask = kj <= (qi + off)
        scores = torch.where(cmask[None, None], scores, -1e9)
        p = _softmax(scores, axis=-1)
        ctx = torch.einsum("bhqk,bhkd->bhqd", p, v)
        return torch.einsum("bhqd,hdm->bqm", ctx, w_o)

    def _B_ref(x, w1, w2):
        h = torch.einsum("bsd,df->bsf", x, w1)
        h = _silu(h)
        out = torch.einsum("bsf,fd->bsd", h, w2)
        return out

    x = A_x
    g = _sigmoid((x * gate_w).sum(-1, keepdims=True))
    a = _A_ref(x, A_c_kv, A_w_q, A_w_uk, A_w_uv, A_w_o)
    b = _B_ref(x, B_w1, B_w2)
    return g * a + (1 - g) * b
```

```python
import re

REG = re.compile(r'^(-|\|)?([vas])(\d+|\[(\d+):(\d+)\])\|?$')
TRANS = ('v_exp_', 'v_log_', 'v_rcp_', 'v_rsq_', 'v_sqrt_', 'v_sin_', 'v_cos_')

def regs(tok):
    tok = tok.strip()
    if tok in ('vcc', 'vcc_lo', 'vcc_hi'): return {('s', 'vcc')}
    if tok in ('exec', 'exec_lo', 'exec_hi'): return {('s', 'exec')}
    if tok == 'm0': return {('s', 'm0')}
    m = REG.match(tok)
    if not m: return set()
    f = m.group(2)
    if m.group(4) is not None:
        return {(f, r) for r in range(int(m.group(4)), int(m.group(5)) + 1)}
    return {(f, int(m.group(3)))}

class Ins:
    pass

def parse(text):
    i = Ins(); i.text = text
    parts = text.split(None, 1)
    mn = parts[0]; i.mn = mn
    rest = parts[1] if len(parts) > 1 else ''
    ops = []; depth = 0; cur = ''
    for ch in rest:
        if ch == '[': depth += 1
        if ch == ']': depth -= 1
        if ch == ',' and depth == 0:
            ops.append(cur.strip()); cur = ''
        else: cur += ch
    if cur.strip(): ops.append(cur.strip())
    mods = ''
    if ops:
        sp = ops[-1].split(None, 1)
        ops[-1] = sp[0]; mods = sp[1] if len(sp) > 1 else ''
    i.ops = ops; i.mods = mods
    R = [regs(o) for o in ops]
    U = lambda l: set().union(*l) if l else set()
    i.states = 1
    i.kind = 'other'; i.defs = set(); i.uses = set(); i.srcC = set(); i.ab = set(); i.data = set()
    i.dpp = 'dpp' in mn or 'quad_perm' in mods or 'row_' in mods
    i.trans = mn.startswith(TRANS); i.dot = mn.startswith('v_dot')
    if mn == 's_nop':
        i.states = int(ops[0]) + 1
    elif mn.startswith(('v_mfma', 'v_smfmac')):
        i.kind = 'mfma'; i.defs = R[0]; i.ab = R[1] | R[2]
        if mn.startswith('v_smfmac'):
            i.srcC = R[0]; i.ab |= R[3]
        else: i.srcC = R[3]
        i.uses = i.ab | i.srcC
    elif mn.startswith('v_'):
        i.kind = 'valu'
        if 'permlane' in mn and 'swap' in mn:
            i.defs = R[0] | R[1]; i.uses = R[0] | R[1]
        elif '_co_' in mn:
            i.defs = R[0] | R[1]; i.uses = U(R[2:])
        else:
            i.defs = R[0]; i.uses = U(R[1:])
            if mn.startswith(('v_fmac', 'v_dot2c', 'v_mac')) or i.dpp: i.uses |= R[0]
            if mn.startswith('v_cndmask') and len(ops) == 3: i.uses |= {('s', 'vcc')}
    elif mn.startswith('ds_'):
        i.kind = 'ds'
        if mn.startswith(('ds_read', 'ds_bpermute', 'ds_permute', 'ds_swizzle')) or '_rtn' in mn:
            i.defs = R[0]; i.uses = U(R[1:])
        else: i.uses = U(R)
    elif mn.startswith('global_'):
        i.kind = 'vmem'
        if 'load_lds' in mn:
            i.uses = U(R) | {('s', 'm0')}
        elif 'load' in mn:
            i.defs = R[0]; i.uses = U(R[1:])
        elif 'store' in mn:
            i.uses = U(R)
            if mn.endswith(('x3', 'x4')): i.data = R[1]
        elif 'atomic' in mn:
            if len(ops) == 4: i.defs = R[0]; i.uses = U(R[1:])
            else: i.uses = U(R)
    elif mn.startswith(('s_load', 's_memrealtime', 's_memtime')):
        i.kind = 'smem'; i.defs = R[0]; i.uses = U(R[1:])
    elif mn.startswith(('s_cmp', 's_cbranch', 's_branch', 's_waitcnt', 's_barrier', 's_endpgm', 's_setprio', 's_sleep', 's_bitcmp')):
        i.kind = 'sctl'; i.uses = U(R)
    elif mn.startswith('s_'):
        i.kind = 'salu'; i.defs = R[0]; i.uses = U(R[1:])
        if 'saveexec' in mn: i.defs |= {('s', 'exec')}
    return i

def vec(s): return {r for r in s if r[0] in 'va'}
def sca(s): return {r for r in s if r[0] == 's'}

def need(p, c):
    n = 0
    if p.kind == 'valu':
        pv = vec(p.defs); ps = sca(p.defs)
        if c.kind == 'mfma' and pv & c.uses: n = max(n, 2)
        if c.kind == 'valu':
            if (c.dpp or 'permlane' in c.mn) and pv & c.uses: n = max(n, 2)
            if c.mn.startswith(('v_readlane', 'v_readfirstlane')) and pv & c.uses: n = max(n, 1)
            if p.trans and pv & c.uses: n = max(n, 1)
            if ps & c.uses: n = max(n, 4 if 'lane' in c.mn else 2)
            if 'op_sel' in p.mods or 'sdwa' in p.mn:
                if pv & (c.uses | c.defs): n = max(n, 1)
        if c.kind == 'vmem' and ps & c.uses: n = max(n, 5)
        if p.dot and pv & (c.uses | c.defs):
            if not (c.mn == p.mn and not (pv & (regs(c.ops[1]) | regs(c.ops[2])))): n = max(n, 3)
    if c.kind == 'valu' and c.dpp and p.kind in ('ds', 'vmem') and vec(p.defs) & c.uses: n = max(n, 2)
    if p.kind == 'mfma':
        if c.kind == 'mfma':
            if p.defs & c.ab: n = max(n, 8)
            if p.defs & c.srcC and p.defs != c.srcC: n = max(n, 6)
            if p.defs & c.defs and p.defs != c.srcC: n = max(n, 6)
        elif c.kind in ('valu', 'vmem', 'ds'):
            if p.defs & (c.uses | c.defs): n = max(n, 8)
            if p.srcC & c.defs: n = max(n, 3)
    if p.kind == 'salu' and ('s', 'm0') in p.defs and c.kind == 'vmem' and 'load_lds' in c.mn: n = max(n, 1)
    if p.data and p.data & c.defs: n = max(n, 2 if c.kind == 'valu' else 1)
    return n

class Asm:
    def __init__(self):
        self.out = []; self.hists = [[]]
        self.vm = 0; self.lg = 0; self.vm_done = 0; self.lg_done = 0
        self.cond = 0; self.saved = []
        self.tail = []
        self.pads = 0
    def raw(self, text):
        self.out.append(text)
    def label(self, name):
        self.out.append(name + ':')
    def comment(self, text):
        self.out.append('; ' + text)
    def __call__(self, text):
        tok = None
        for t in text.strip().split('\n'):
            t = t.strip()
            if t: tok = self.one(t)
        return tok
    def one(self, text):
        c = parse(text)
        pad = 0
        for hist in self.hists:
            gap = 0
            for p in reversed(hist):
                pad = max(pad, need(p, c) - gap)
                gap += p.states
                if gap >= 10: break
        if pad > 0:
            self.pads += pad
            nop = parse(f's_nop {pad-1}')
            self.out.append('  ' + nop.text)
            for hist in self.hists: hist.append(nop)
        self.out.append('  ' + text)
        uniq = []
        for hist in self.hists:
            hist.append(c); h = hist[-12:]
            if h not in uniq: uniq.append(h)
        self.hists = uniq
        if c.kind == 'vmem':
            self.vm += 1; return ('vm', self.vm)
        if c.kind == 'ds':
            self.lg += 1; return ('lg', self.lg)
        return None
    def wait(self, *toks):
        v = l = None
        for k, n in [t for t in toks if t]:
            if k == 'vm' and n > self.vm_done:
                x = min(63, self.vm - n); v = x if v is None else min(v, x)
            if k == 'lg' and n > self.lg_done:
                x = min(15, self.lg - n); l = x if l is None else min(l, x)
        s = []
        if v is not None: s.append(f'vmcnt({v})'); self.vm_done = self.vm - v
        if l is not None: s.append(f'lgkmcnt({l})'); self.lg_done = self.lg - l
        if s: self.one('s_waitcnt ' + ' '.join(s))
    def wait_all(self, vm=False, lg=False):
        s = []
        if vm: s.append('vmcnt(0)'); self.vm_done = self.vm
        if lg: s.append('lgkmcnt(0)'); self.lg_done = self.lg
        self.one('s_waitcnt ' + ' '.join(s))
    def lastvm(self): return ('vm', self.vm)
    def lastlg(self): return ('lg', self.lg)
    def begin_cond(self):
        self.saved.append((self.vm, self.lg, self.vm_done, self.lg_done, [list(h) for h in self.hists]))
    def end_cond(self, label):
        vm, lg, vd, ld, hists = self.saved.pop()
        self.vm, self.lg = vm, lg
        self.vm_done, self.lg_done = min(vd, vm - 1), min(ld, lg - 1)
        self.hists += hists
        self.label(label)
        return ('vm', vm), ('lg', lg)
    def text(self):
        return '\n'.join(self.out + self.tail)
```

```python
import sys, struct, math
from asmlib import Asm
NAME = 'gated_mix__compressed_kv_cla__dense_activation_silu__decode'
DEF = dict(rot=1, stamps=0, ntw=1, ntc=0, order='a', rpoll='atomic', maxtry=20000)
def f2u(x): return struct.unpack('<I', struct.pack('<f', x))[0]
LOG2E = 1.4426950408889634

QB, QA, FB, PB, OB = 0x10000, 0x30000, 0x40000, 0x80000, 0x100000
STAMP = 128 << 20
R = [0, 33536, 66816, 100096]
WO = 16640
QI2 = 133376; CX = QI2
W1 = 141824; W2 = 150272
QI = 158720; PI = QI
MX = 160960; LS = 161088; HH = 162240; GG = 162368
LDS = 162432

def gen(**kw):
    o = dict(DEF); o.update(kw)
    a = Asm()
    ntw = ' nt' if o['ntw'] else ''
    ntc = ' nt' if o['ntc'] else ''
    sX, sCKV, sWQ, sWUK, sWUV, sWOp, sW1p, sW2p, sGW, sOUT, sWS = 's[4:5]', 's[6:7]', 's[8:9]', 's[10:11]', 's[12:13]', 's[14:15]', 's[18:19]', 's[20:21]', 's[22:23]', 's[24:25]', 's[28:29]'
    sW, sT, sH, sJ, sXCD, sI, sHG, sKB, sBX, sFG, sFC = 's30', 's31', 's32', 's33', 's34', 's35', 's36', 's37', 's38', 's39', 's40'
    sM8 = 's41'
    sCK = ['s[42:43]', 's[44:45]', 's[46:47]', 's[48:49]']
    mN1, mQST, mKT, mCX, mML, mFFN, mFZ = 's[50:51]', 's[52:53]', 's[54:55]', 's[56:57]', 's[58:59]', 's[60:61]', 's[62:63]'
    t0, t1, t2, t3 = 's64', 's65', 's66', 's67'
    sTry = 's68'
    STAMP0 = 70
    nst = [0]; names = []
    def stamp(name):
        if o['stamps']:
            r = STAMP0 + 2 * nst[0]; assert r <= 100
            a(f's_memrealtime s[{r}:{r+1}]'); nst[0] += 1; names.append(name)
    nv = [1]
    def V(n=1, al=1):
        r = (nv[0] + al - 1) // al * al; nv[0] = r + n; assert nv[0] <= 256, nv[0]; return r
    def v(r, n=1): return f'v{r}' if n == 1 else f'v[{r}:{r+n-1}]'
    def ac(r, n=1): return f'a{r}' if n == 1 else f'a[{r}:{r+n-1}]'
    vL, vG, vN, vSW, vR2, vQ2, vN7, vNH = [V() for _ in range(8)]
    vT = [V() for _ in range(7)]
    vW = V(4); vCK = V(8); vX = V(); vP = V()
    vSA, vSA2, vTR, vTR2, vTO, vTO2 = [V() for _ in range(6)]
    vQBs, vQBl, vQIw, vQIr, vQAs, vQAl, vQ2r = [V() for _ in range(7)]
    vQ2w = V(4)
    vMXw, vMXr, vMXr2, vPw, vPr, vLSw, vLSr, vMLs, vOs0, vOs1, vOl, vMLl, vMLr = [V() for _ in range(13)]
    vCXw, vCXr, vUV, vWOa, vW1a, vW2a, vFs, vFl, vHw, vHr, vYs, vYl, vRs, vRl, vOut = [V() for _ in range(15)]
    vMask = V(4); vGate = V(); vOmg = V(); vScl = V(); vZero = V(2, 2)
    vNeg = V(4, 4); vXo = V(8, 4)
    vQ = V(64, 4); vO = V(32, 4); vS = V(8, 4); vA = V(16, 4); vB = V(16, 4); vE = V(4, 4); vPub = V(8, 4)
    vWD = vQ; vWE = vQ + 16; vWF1 = vQ + 32; vWF2 = vQ + 40; vFg = vQ + 48
    MF = 'v_mfma_f32_16x16x32_bf16'
    DPP = ' row_mask:0xf bank_mask:0xf'
    def mfma(d, x, y, c): a(f'{MF} {v(d,4)}, {x}, {y}, {c}')
    def setexec(m):
        if isinstance(m, str): a(f's_mov_b64 exec, {m}')
        else: a(f's_mov_b64 exec, {m:#x}' if m > 64 else f's_mov_b64 exec, {m}')
    def dma(vaddr, base, flag, m0step=None, filler=None):
        if m0step is not None: a(f's_add_u32 m0, m0, {m0step}')
        if filler: a(filler)
        return a(f'global_load_lds_dwordx4 {v(vaddr)}, {base}{flag}')
    def retry(name, loads):
        a.tail += [f'L{name}_retry:', '  s_nop 7', f'  s_add_u32 {sTry}, {sTry}, 1', f'  s_cmp_gt_u32 {sTry}, {o["maxtry"]}', f'  s_cbranch_scc1 L{name}_ok', '  s_waitcnt lgkmcnt(0)']
        a.tail += ['  ' + l for l in loads]
        a.tail += ['  s_waitcnt vmcnt(0)', '  s_nop 1', f'  s_branch L{name}_chk']

    a('s_load_dwordx16 s[4:19], s[0:1], 0')
    a('s_load_dwordx8 s[20:27], s[0:1], 64')
    a('s_load_dwordx2 s[28:29], s[0:1], 96')
    a('s_cmp_ge_u32 s2, 256')
    a('s_cbranch_scc1 Lend')
    a('s_getpc_b64 s[64:65]')
    a.label('Lpc')
    a(f'v_lshlrev_b32 {v(vT[0])}, 7, v0')
    a(f'v_min_u32 {v(vT[0])}, Lcode_end-Lpc-4, {v(vT[0])}')
    a(f'global_load_dword {v(vT[1])}, {v(vT[0])}, s[64:65]')
    stamp('start')
    a(f'v_lshrrev_b32 {v(vT[2])}, 6, v0')
    a(f'v_and_b32 {v(vL)}, 63, v0')
    a(f'v_readfirstlane_b32 {sW}, {v(vT[2])}')
    a(f's_and_b32 {sXCD}, s2, 7')
    a(f's_lshr_b32 {sI}, s2, 3')
    a(f's_lshr_b32 {t2}, {sI}, 3')
    a(f's_lshl2_add_u32 {sH}, {sXCD}, {t2}')
    a(f's_and_b32 {sJ}, {sI}, 7')
    a(f's_lshl3_add_u32 {sFG}, {t2}, {sXCD}')
    a(f'v_lshrrev_b32 {v(vG)}, 4, {v(vL)}')
    a(f'v_and_b32 {v(vN)}, 15, v0')
    a(f'v_lshlrev_b32 {v(vSW)}, 2, {v(vG)}')
    a(f'v_xor_b32 {v(vSW)}, {v(vSW)}, {v(vN)}')
    a(f'v_lshlrev_b32 {v(vSW)}, 4, {v(vSW)}')
    a(f's_lshr_b32 {t2}, {sW}, 1')
    a(f's_lshl_b32 {t2}, {t2}, 3')
    a(f's_and_b32 {t3}, {sW}, 1')
    a(f's_add_u32 {t2}, {t2}, {t3}')
    a(f's_lshl4_add_u32 {t2}, {sJ}, {t2}')
    a(f's_lshl_b32 {t2}, {t2}, 15')
    a(f's_lshl_b32 {t3}, {sH}, 8')
    a(f's_add_u32 {t2}, {t2}, {t3}')
    a(f'v_lshl_add_u32 {v(vW)}, {v(vG)}, 13, {v(vSW)}')
    a(f'v_add_u32 {v(vW)}, {t2}, {v(vW)}')
    a(f's_mul_i32 {sM8}, {sW}, 8320')
    a(f's_add_u32 m0, {sM8}, {R[3] + 4160}')
    a(f's_lshl_b32 {t3}, {sJ}, 7')
    a(f'v_lshl_add_u32 {v(vX)}, {v(vG)}, 4, {t3}')
    a(f's_lshl3_add_u32 {sBX}, {sH}, {sJ}')
    a(f's_lshl_b32 {t3}, {sBX}, 10')
    a(f's_add_u32 {t3}, {t3}, {PB}')
    a(f'v_lshl_add_u32 {v(vP)}, v0, 2, {t3}')
    for r in range(4): a(f'v_mov_b32 {v(vNeg+r)}, -1')
    for p in range(1, 4): a(f'v_add_u32 {v(vW+p)}, {65536*p}, {v(vW)}')
    a(f's_and_b32 {sHG}, {sI}, 3')
    a(f's_lshr_b32 {t3}, {sI}, 2')
    a(f's_lshl3_add_u32 {sKB}, {sXCD}, {t3}')
    a(f'v_lshl_add_u32 {v(vCK)}, {v(vG)}, 10, {v(vSW)}')
    a(f's_lshl_b32 {t3}, {sW}, 15')
    a(f'v_add_u32 {v(vCK)}, {t3}, {v(vCK)}')
    a(f's_mov_b32 {sTry}, 0')
    a('s_waitcnt lgkmcnt(0)')
    a(f's_load_dword {sT}, {sWS}, 0')
    for p in range(4): tWQ = dma(vW + p, sWQ, ntw, 1040 if p else None)
    a(f'global_load_dwordx4 {v(vXo,4)}, {v(vX)}, {sX}')
    a(f'global_load_dwordx4 {v(vXo+4,4)}, {v(vX)}, {sX} offset:64')
    tP1 = a(f'global_store_dword {v(vP)}, {v(vNeg)}, {sWS} sc1')
    a(f's_lshl_b32 {t2}, {sKB}, 17')
    for s in range(4):
        lo = 42 + 2 * s
        if o['rot']:
            if s: a(f's_add_u32 {t3}, {sHG}, {s}'); a(f's_and_b32 {t3}, {t3}, 3'); a(f's_lshl_b32 {t3}, {t3}, 8')
            else: a(f's_lshl_b32 {t3}, {sHG}, 8')
            a(f's_add_u32 {t3}, {t3}, {t2}')
        else:
            a(f's_add_u32 {t3}, {t2}, {256*s}')
        a(f's_add_u32 s{lo}, s6, {t3}'); a(f's_addc_u32 s{lo+1}, s7, 0')
    first_ck = [True]
    def stage(s):
        a(f's_add_u32 m0, {sM8}, {R[s]}')
        for p in range(8):
            fill = f'v_add_u32 {v(vCK+p)}, {4096*p}, {v(vCK)}' if (first_ck[0] and p) else None
            t = dma(vCK + p, sCK[s], ntc, 1040 if p else None, fill)
        first_ck[0] = False
        return t
    def wuk():
        a(f's_add_u32 m0, {sM8}, {R[3]}')
        for p in range(4): t = dma(vW + p, sWUK, ntw, 1040 if p else None)
        return t
    tS = [None] * 4
    a('s_barrier')
    if o['order'] == 'a':
        tS[0] = stage(0); a('s_barrier'); tUK = wuk()
    else:
        tUK = wuk(); a('s_barrier'); tS[0] = stage(0)
    stamp('issued')

    a(f'v_bfe_u32 {v(vR2)}, v0, 2, 2')
    a(f'v_and_b32 {v(vQ2)}, 3, v0')
    a(f'v_and_b32 {v(vN7)}, 7, v0')
    a(f'v_bfe_u32 {v(vNH)}, v0, 3, 1')
    T0, T1, T2, T3, T4, T5, T6 = [v(x) for x in vT]
    a(f'v_mul_u32_u24 {T0}, 1040, {v(vG)}')
    a(f'v_lshl_add_u32 {T0}, {v(vR2)}, 8, {T0}')
    a(f'v_xor_b32 {T2}, {sW}, {v(vR2)}')
    a(f'v_lshl_add_u32 {T0}, {T2}, 6, {T0}')
    a(f'v_and_b32 {T2}, 2, v0')
    a(f'v_lshl_add_u32 {T0}, {T2}, 4, {T0}')
    a(f'v_and_b32 {T2}, 1, v0')
    a(f'v_lshl_add_u32 {v(vTR)}, {T2}, 3, {T0}')
    a(f'v_add_u32 {v(vTR2)}, {R[2]}, {v(vTR)}')
    a(f'v_mul_u32_u24 {T0}, 1040, {v(vR2)}')
    a(f'v_lshl_add_u32 {T0}, {v(vQ2)}, 8, {T0}')
    a(f'v_xor_b32 {T2}, {v(vG)}, {v(vQ2)}')
    a(f'v_lshl_add_u32 {T0}, {T2}, 6, {T0}')
    a(f'v_add_u32 {v(vSA)}, {sM8}, {T0}')
    a(f'v_add_u32 {v(vSA2)}, {R[2]}, {v(vSA)}')
    a(f's_lshl_b32 {t2}, {sBX}, 13'); a(f's_lshl_b32 {t3}, {sW}, 11'); a(f's_add_u32 {t2}, {t2}, {t3}'); a(f's_add_u32 {t2}, {t2}, {OB}')
    a(f'v_lshl_add_u32 {v(vOl)}, {v(vL)}, 4, {t2}')
    a(f'global_store_dwordx4 {v(vOl)}, {v(vNeg,4)}, {sWS} sc1')
    tP2 = a(f'global_store_dwordx4 {v(vOl)}, {v(vNeg,4)}, {sWS} offset:1024 sc1')
    a(f'v_lshlrev_b32 {T6}, 4, {v(vL)}')
    a(f's_cmp_eq_u32 {sW}, 3'); a('s_cselect_b64 exec, -1, 1')
    a(f'global_load_dwordx4 {v(vO,4)}, {T6}, {sX}')
    a(f'global_load_dwordx4 {v(vO+4,4)}, {T6}, {sGW}')
    setexec(-1)
    a(f's_lshl_b32 {t2}, {sBX}, 9'); a(f's_lshl_b32 {t3}, {sW}, 7'); a(f's_add_u32 {t2}, {t2}, {t3}'); a(f's_add_u32 {t2}, {t2}, {QB}')
    a(f'v_lshlrev_b32 {T0}, 5, {v(vG)}')
    a(f'v_lshl_add_u32 {T0}, {v(vN)}, 4, {T0}')
    a(f'v_add_u32 {v(vQBs)}, {t2}, {T0}')
    a(f's_lshl_b32 {t2}, {sH}, 12'); a(f's_add_u32 {t2}, {t2}, {QB}')
    a(f'v_lshl_add_u32 {v(vQBl)}, v0, 4, {t2}')
    a(f'v_lshrrev_b32 {T0}, 5, v0')
    a(f'v_and_b32 {T2}, 3, {T0}')
    a(f'v_lshlrev_b32 {T3}, 8, {T0}')
    a(f'v_lshl_add_u32 {T3}, {T2}, 4, {T3}')
    a(f'v_and_b32 {T2}, 4, {T0}')
    a(f'v_lshl_add_u32 {T3}, {T2}, 5, {T3}')
    a(f'v_and_b32 {T2}, 28, v0')
    a(f'v_lshl_add_u32 {T3}, {T2}, 3, {T3}')
    a(f'v_and_b32 {T2}, 1, v0')
    a(f'v_lshl_add_u32 {T3}, {T2}, 4, {T3}')
    a(f'v_and_b32 {T2}, 2, v0')
    a(f'v_lshl_add_u32 {T3}, {T2}, 2, {T3}')
    a(f'v_add_u32 {v(vQIw)}, {QI}, {T3}')
    a(f'v_and_b32 {T0}, 4, v0')
    a(f'v_lshlrev_b32 {T0}, 5, {T0}')
    a(f'v_lshl_add_u32 {T0}, {v(vQ2)}, 4, {T0}')
    a(f'v_lshl_add_u32 {T0}, {v(vG)}, 6, {T0}')
    a(f'v_lshl_add_u32 {T2}, {v(vN7)}, 8, {T0}')
    a(f'v_add_u32 {v(vQIr)}, {QI}, {T2}')
    a(f'v_lshl_add_u32 {T2}, {v(vN7)}, 10, {T0}')
    a(f'v_add_u32 {v(vQ2r)}, {QI2}, {T2}')
    a(f's_lshl_b32 {t2}, {sBX}, 8'); a(f's_lshr_b32 {t3}, {sW}, 1'); a(f's_lshl_b32 {t3}, {t3}, 7'); a(f's_add_u32 {t2}, {t2}, {t3}')
    a(f's_and_b32 {t1}, {sW}, 1'); a(f's_lshl4_add_u32 {t2}, {t1}, {t2}'); a(f's_add_u32 {t2}, {t2}, {QA}')
    a(f'v_lshlrev_b32 {T0}, 5, {v(vR2)}')
    a(f'v_lshl_add_u32 {T0}, {v(vQ2)}, 2, {T0}')
    a(f'v_add_u32 {v(vQAs)}, {t2}, {T0}')
    a(f's_lshl2_add_u32 {t2}, {sHG}, {sW}'); a(f's_lshl_b32 {t2}, {t2}, 12'); a(f's_add_u32 {t2}, {t2}, {QA}')
    a(f'v_lshl_add_u32 {v(vQAl)}, {v(vL)}, 4, {t2}')
    a(f's_lshl_b32 {t2}, {sW}, 11'); a(f's_add_u32 {t2}, {t2}, {t3}'); a(f's_lshl_b32 {t1}, {t1}, 5'); a(f's_add_u32 {t2}, {t2}, {t1}'); a(f's_add_u32 {t2}, {t2}, {QI2}')
    a(f'v_and_b32 {T0}, 31, v0')
    a(f'v_lshl_add_u32 {T0}, {T0}, 3, {t2}')
    a(f'v_lshrrev_b32 {T2}, 5, {v(vL)}')
    if o['rot']:
        a(f'v_subrev_u32 {T2}, {sHG}, {T2}')
        a(f'v_and_b32 {T2}, 3, {T2}')
    a(f'v_lshl_add_u32 {v(vQ2w)}, {T2}, 8, {T0}')
    a(f'v_xor_b32 {T2}, 2, {T2}')
    a(f'v_lshl_add_u32 {v(vQ2w+1)}, {T2}, 8, {T0}')
    a(f'v_add_u32 {v(vQ2w+2)}, 1040, {v(vQ2w)}')
    a(f'v_add_u32 {v(vQ2w+3)}, 1040, {v(vQ2w+1)}')
    a(f'v_lshlrev_b32 {T0}, 4, {v(vN7)}')
    a(f'v_add_u32 {v(vMXr)}, {MX}, {T0}')
    a(f's_lshl_b32 {t2}, {sW}, 2')
    a(f'v_add_u32 {v(vMXw)}, {t2}, {v(vMXr)}')
    a(f'v_lshrrev_b32 {T4}, 3, {v(vL)}')
    a(f'v_lshlrev_b32 {T2}, 4, {T4}')
    a(f'v_add_u32 {v(vMXr2)}, {MX}, {T2}')
    a(f'v_lshl_add_u32 {T2}, {v(vG)}, 7, {T0}')
    a(f'v_lshl_add_u32 {T2}, {v(vNH)}, 3, {T2}')
    a(f's_lshl_b32 {t2}, {sW}, 9'); a(f's_add_u32 {t2}, {t2}, {PI}')
    a(f'v_add_u32 {v(vPw)}, {t2}, {T2}')
    a(f'v_lshlrev_b32 {T2}, 5, {v(vNH)}')
    a(f'v_xor_b32 {T2}, {T2}, {T0}')
    a(f'v_lshl_add_u32 {T2}, {v(vG)}, 7, {T2}')
    a(f'v_add_u32 {v(vPr)}, {PI}, {T2}')
    a(f'v_mul_u32_u24 {T2}, 144, {v(vN7)}')
    a(f'v_lshl_add_u32 {T2}, {T4}, 2, {T2}')
    a(f's_lshl_b32 {t2}, {sW}, 5'); a(f's_add_u32 {t2}, {t2}, {LS}')
    a(f'v_add_u32 {v(vLSw)}, {t2}, {T2}')
    a(f'v_mul_u32_u24 {T2}, 144, {T4}')
    a(f'v_add_u32 {T2}, {T2}, {T0}')
    a(f'v_add_u32 {v(vLSr)}, {LS}, {T2}')
    a(f's_lshl_b32 {t2}, {sHG}, 16'); a(f's_lshl3_add_u32 {t2}, {sKB}, {t2}'); a(f's_add_u32 {t2}, {t2}, {PB}')
    a(f'v_lshl_add_u32 {v(vMLs)}, {v(vL)}, 10, {t2}')
    a(f's_lshl_b32 {t2}, {sHG}, 19'); a(f's_lshl_b32 {t3}, {sW}, 14'); a(f's_add_u32 {t2}, {t2}, {t3}')
    a(f's_lshl_b32 {t3}, {sKB}, 7'); a(f's_add_u32 {t2}, {t2}, {t3}'); a(f's_add_u32 {t2}, {t2}, {OB}')
    a(f'v_and_b32 {T5}, 1, {v(vG)}')
    a(f'v_lshl_add_u32 {T2}, {T5}, 18, {T0}')
    a(f'v_and_b32 {T3}, 32, v0')
    a(f'v_lshl_add_u32 {T2}, {T3}, 12, {T2}')
    a(f'v_lshl_add_u32 {T2}, {v(vNH)}, 13, {T2}')
    a(f'v_add_u32 {v(vOs0)}, {t2}, {T2}')
    a(f'v_add_u32 {v(vOs1)}, 65536, {v(vOs0)}')
    a(f's_lshl_b32 {t2}, {sBX}, 10'); a(f's_add_u32 {t2}, {t2}, {PB}')
    a(f'v_lshl_add_u32 {v(vMLl)}, {v(vL)}, 3, {t2}')
    a(f's_lshl_b32 {t3}, {sW}, 7'); a(f's_add_u32 {t2}, {t2}, {t3}')
    a(f'v_lshl_add_u32 {v(vMLr)}, {T4}, 3, {t2}')
    a(f'v_mul_u32_u24 {T2}, 160, {v(vNH)}')
    a(f'v_add_u32 {T2}, {T2}, {T0}')
    a(f'v_lshl_add_u32 {T2}, {T5}, 3, {T2}')
    a(f's_mul_i32 {t2}, {sW}, 320'); a(f's_add_u32 {t2}, {t2}, {CX}')
    a(f'v_add_u32 {v(vCXw)}, {t2}, {T2}')
    a(f'v_mul_u32_u24 {T2}, 160, {v(vN7)}')
    a(f'v_lshl_add_u32 {T2}, {v(vG)}, 4, {T2}')
    a(f'v_add_u32 {v(vCXr)}, {CX}, {T2}')
    a(f's_and_b32 {t2}, {sW}, 1'); a(f's_lshl_b32 {t2}, {t2}, 1')
    if o['rot']:
        a(f's_lshr_b32 {t3}, {sH}, 3'); a(f's_add_u32 {t2}, {t2}, {t3}')
    a(f'v_lshrrev_b32 {T2}, 1, {v(vG)}')
    a(f'v_add_u32 {T2}, {t2}, {T2}')
    a(f'v_and_b32 {T2}, 3, {T2}')
    a(f'v_lshl_add_u32 {T2}, {T2}, 20, {v(vSW)}')
    a(f'v_lshl_add_u32 {T2}, {T5}, 16, {T2}')
    a(f's_lshr_b32 {t2}, {sW}, 1'); a(f's_lshl2_add_u32 {t2}, {sJ}, {t2}'); a(f's_lshl_b32 {t2}, {t2}, 15')
    a(f's_lshl_b32 {t3}, {sH}, 8'); a(f's_add_u32 {t2}, {t2}, {t3}')
    a(f'v_add_u32 {v(vUV)}, {t2}, {T2}')
    a(f'v_lshlrev_b32 {T2}, 6, {T5}')
    a(f'v_xor_b32 {T2}, {T2}, {T0}')
    a(f'v_lshl_add_u32 {T3}, {T4}, 10, {T2}')
    a(f's_lshl2_add_u32 {t2}, {sH}, {sW}'); a(f's_lshl_b32 {t2}, {t2}, 15'); a(f's_lshl_b32 {t1}, {sJ}, 7'); a(f's_add_u32 {t2}, {t2}, {t1}')
    a(f'v_add_u32 {v(vWOa)}, {t2}, {T3}')
    a(f's_lshl_b32 {sFC}, {sFG}, 6'); a(f's_min_u32 {sFC}, {sFC}, 1312')
    a(f's_lshl4_add_u32 {t2}, {sW}, {sFC}'); a(f's_lshl_b32 {t2}, {t2}, 10'); a(f's_add_u32 {t2}, {t2}, {t1}')
    a(f'v_add_u32 {v(vW2a)}, {t2}, {T3}')
    a(f'v_mul_u32_u24 {T3}, 2752, {T4}')
    a(f'v_add_u32 {T3}, {T3}, {T2}')
    a(f's_lshl2_add_u32 {t2}, {sJ}, {sW}'); a(f's_mul_i32 {t2}, {t2}, {16*2752}'); a(f's_lshl1_add_u32 {t2}, {sFC}, {t2}')
    a(f'v_add_u32 {v(vW1a)}, {t2}, {T3}')
    a(f'v_mul_u32_u24 {T2}, 1056, {v(vG)}')
    a(f'v_lshl_add_u32 {T2}, {v(vR2)}, 7, {T2}')
    a(f'v_and_b32 {T3}, 2, {v(vR2)}')
    a(f'v_xor_b32 {T3}, {sW}, {T3}')
    a(f'v_lshl_add_u32 {T2}, {T3}, 5, {T2}')
    a(f'v_lshl_add_u32 {v(vTO)}, {v(vQ2)}, 3, {T2}')
    a(f'v_add_u32 {v(vTO2)}, {W1}, {v(vTO)}')
    a(f's_lshl_b32 {t2}, {sFG}, 12'); a(f's_add_u32 {t2}, {t2}, {FB}')
    a(f'v_lshl_add_u32 {v(vFl)}, {v(vL)}, 4, {t2}')
    a(f's_lshl2_add_u32 {t3}, {sJ}, {sW}'); a(f's_lshl_b32 {t1}, {t3}, 7'); a(f's_add_u32 {t2}, {t2}, {t1}')
    a(f'v_lshl_add_u32 {v(vFs)}, {v(vN)}, 3, {t2}')
    a(f'v_and_b32 {T2}, 31, v0')
    a(f'v_lshlrev_b32 {T3}, 2, {T2}')
    a(f'v_add_u32 {v(vHw)}, {HH}, {T3}')
    a(f'v_lshlrev_b32 {T3}, 4, {v(vG)}')
    a(f'v_add_u32 {v(vHr)}, {HH}, {T3}')
    a(f's_lshl_b32 {t2}, {t3}, 5')
    a(f'v_lshrrev_b32 {T1}, 5, {v(vL)}')
    a(f'v_lshlrev_b32 {T3}, 1, {T1}')
    a(f'v_lshl_add_u32 {T3}, {v(vN7)}, 2, {T3}')
    a(f'v_add_u32 {v(vOut)}, {t2}, {T3}')
    a(f's_lshl_b32 {t2}, {t3}, 13'); a(f's_add_u32 {t2}, {t2}, {PB + 768}')
    a(f'v_lshlrev_b32 {T3}, 3, {T2}')
    a(f'v_lshl_add_u32 {T3}, {T1}, 10, {T3}')
    a(f's_add_u32 {t1}, {t2}, 4096')
    a(f'v_add_u32 {v(vRl)}, {t1}, {T3}')
    a(f's_lshr_b32 {t1}, {sH}, 2'); a(f's_lshl_b32 {t1}, {t1}, 10'); a(f's_add_u32 {t2}, {t2}, {t1}')
    a(f's_and_b32 {t1}, {sH}, 3'); a(f's_lshl_b32 {t1}, {t1}, 6'); a(f's_add_u32 {t2}, {t2}, {t1}')
    a(f'v_lshl_add_u32 {v(vRs)}, {v(vN)}, 2, {t2}')
    a(f's_lshl_b32 {t2}, {sH}, 13'); a(f's_add_u32 {t2}, {t2}, {PB + 512}')
    a(f'v_lshl_add_u32 {T3}, {T5}, 7, {T0}')
    a(f'v_lshl_add_u32 {T3}, {T1}, 10, {T3}')
    a(f's_add_u32 {t1}, {t2}, 4096')
    a(f'v_add_u32 {v(vYl)}, {t1}, {T3}')
    a(f's_lshl_b32 {t1}, {sW}, 11'); a(f's_add_u32 {t2}, {t2}, {t1}'); a(f's_lshl4_add_u32 {t2}, {sJ}, {t2}')
    a(f'v_lshlrev_b32 {T3}, 1, {v(vN7)}')
    a(f'v_lshl_add_u32 {T3}, {T5}, 7, {T3}')
    a(f'v_lshl_add_u32 {T3}, {v(vNH)}, 10, {T3}')
    a(f'v_add_u32 {v(vYs)}, {t2}, {T3}')
    a(f'v_and_b32 {T2}, 1, v0')
    a(f'v_lshlrev_b32 {T2}, 4, {T2}')
    a(f's_mov_b32 {t2}, 0xffff')
    a(f'v_lshlrev_b32 {T2}, {T2}, {t2}')
    a(f'v_lshrrev_b32 {T3}, 1, {v(vN7)}')
    for d in range(4):
        a(f'v_cmp_eq_u32 vcc, {d}, {T3}')
        a(f'v_cndmask_b32 {v(vMask+d)}, 0, {T2}, vcc')
    a(f'v_mov_b32 {v(vScl)}, {f2u(LOG2E / math.sqrt(128.0)):#x}')
    a(f'v_mov_b32 {v(vZero)}, 0'); a(f'v_mov_b32 {v(vZero+1)}, 0')
    a('s_mov_b32 s50, 0x00020002'); a('s_mov_b32 s51, s50')
    a('s_mov_b32 s52, 0x00030003'); a('s_mov_b32 s53, s52')
    a('s_mov_b32 s54, 0xff00ff00'); a('s_mov_b32 s55, s54')
    a('s_mov_b32 s56, 0x00ff00ff'); a('s_mov_b32 s57, s54')
    a(f's_lshl_b32 {t3}, {sW}, 4'); a(f's_mov_b64 {mML}, 0xffff'); a(f's_lshl_b64 {mML}, {mML}, {t3}')
    a(f's_cmp_lt_u32 {sFG}, 22'); a(f's_cselect_b64 {mFFN}, -1, 1')
    a(f's_cmp_eq_u32 {sFG}, 21'); a('s_cselect_b32 s62, 0xffff, 0'); a('s_mov_b32 s63, s62')
    a('s_waitcnt lgkmcnt(0)')
    a(f's_add_u32 {sT}, {sT}, 0x9e3779b1')
    a(f'v_mov_b32 {v(vPub+1)}, {sT}'); a(f'v_mov_b32 {v(vPub+3)}, {sT}')
    stamp('setup')

    a.wait(tP1)
    a('s_barrier')
    stamp('wq')
    tr = {}
    for b in range(2):
        for ks in range(2):
            for u in range(2):
                tr[b, ks] = a(f'ds_read_b64_tr_b16 {v(vA + 8*b + 4*ks + 2*u, 2)}, {v(vTR2)} offset:{33280 + 1040*(16*ks + 8*u + 4) + 16*b}')
    for b in range(2):
        for ks in range(2):
            a.wait(tr[b, ks])
            mfma(vS + 4*b, v(vA + 8*b + 4*ks, 4), v(vXo + 4*ks, 4), v(vS + 4*b, 4) if ks else '0')
    a(f'v_cvt_pk_bf16_f32 {T0}, {v(vS)}, {v(vS+1)}')
    a(f'v_cvt_pk_bf16_f32 {T1}, {v(vS+2)}, {v(vS+3)}')
    a(f'v_cvt_pk_bf16_f32 {T2}, {v(vS+4)}, {v(vS+5)}')
    a(f'v_cvt_pk_bf16_f32 {T3}, {v(vS+6)}, {v(vS+7)}')
    setexec(mQST)
    a(f'v_cndmask_b32 {v(vPub)}, {T0}, {T2}, {mN1}')
    a(f'v_cndmask_b32 {v(vPub+2)}, {T1}, {T3}, {mN1}')
    a(f'global_store_dwordx4 {v(vQBs)}, {v(vPub,4)}, {sWS} sc1')
    setexec(-1)
    stamp('qpub')

    def sreads(s):
        base, off = (vSA, R[s]) if s < 2 else (vSA2, R[s] - R[2])
        l = []
        for ks in range(4):
            for kt in range(2):
                l.append(f'ds_read_b128 {ac(128 + ((s*4 + ks)*2 + kt)*4, 4)}, {v(base)} offset:{off + 16*ks + 4160*kt}')
        return l
    def pvreads(s):
        base, off = (vTR, R[s]) if s < 2 else (vTR2, R[s] - R[2])
        l = []
        for ks in range(4):
            for b in range(2):
                for u in range(2):
                    l.append(f'ds_read_b64_tr_b16 {ac(((s*2 + b)*4 + ks)*4 + 2*u, 2)}, {v(base)} offset:{off + 1040*(8*ks + 4*u) + 16*b}')
        return l

    a.wait(tS[0] if o['order'] == 'a' else tUK)
    ldq = f'global_load_dwordx4 {v(vE,4)}, {v(vQBl)}, {sWS} sc1'
    tQ = a(ldq)
    a('s_barrier')
    tS[1] = stage(1)
    a.wait(tUK, tS[0])
    for ks in range(4): tb = a(f'ds_read_b128 {v(vB + 4*ks, 4)}, {v(vSA2)} offset:{33280 + 16*ks}')
    for l in sreads(0): a(l)
    a.wait(tQ)
    a.label('Lq_chk')
    a(f'ds_write2_b32 {v(vQIw)}, {v(vE)}, {v(vE+2)} offset0:0 offset1:1')
    a(f'v_bitop3_b32 {T0}, {v(vE+1)}, {v(vE+3)}, {sT} bitop3:0x7e')
    a(f'v_cmp_ne_u32 vcc, 0, {T0}')
    a('s_cbranch_vccnz Lq_retry')
    a.label('Lq_ok'); retry('q', [ldq])
    a.wait_all(lg=True)
    a('s_barrier')
    stamp('qgot')

    tq = [a(f'ds_read_b128 {v(vA + 4*ks, 4)}, {v(vQIr)} offset:{16*ks}') for ks in range(4)]
    for ks in range(4):
        a.wait(tq[ks])
        mfma(vS, v(vA + 4*ks, 4), v(vB + 4*ks, 4), v(vS, 4) if ks else '0')
    pv0 = pvreads(0)
    for l in pv0[:8]: a(l)
    a(f'v_add_f32 {T0}, {v(vS)}, {v(vS+1)}')
    a(f'v_add_f32 {T1}, {v(vS+2)}, {v(vS+3)}')
    a(f'v_add_f32 {T0}, {T0}, {T1}')
    a(f'v_mov_b32 {T1}, {T0}')
    a(f'v_permlane16_swap_b32 {T0}, {T1}')
    a(f'v_add_f32 {T0}, {T0}, {T1}')
    a(f'v_mul_f32 {T1}, {T0}, {v(vScl)}')
    a(f'v_mul_f32_dpp {T2}, {T0}, {v(vScl)} quad_perm:[1,1,3,3]{DPP}')
    a(f'v_cvt_pk_bf16_f32 {v(vPub)}, {T1}, {T2}')
    setexec(0x5555)
    a(f'global_store_dwordx2 {v(vQAs)}, {v(vPub,2)}, {sWS} sc1')
    setexec(-1)
    stamp('qapub')
    for l in pv0[8:]: a(l)
    tS[2] = stage(2)
    ldqa = [f'global_load_dwordx4 {v(vA + 4*y, 4)}, {v(vQAl)}, {sWS} offset:{1024*y} sc1' for y in range(4)]
    a.wait(tS[1])
    tQA = [a(l) for l in ldqa]
    a.wait_all(lg=True)
    a('s_barrier')
    tS[3] = stage(3)
    a(f's_mul_i32 {t2}, {sW}, 2112'); a(f's_add_u32 m0, {t2}, {W1}')
    setexec(mFFN)
    dma(vW1a, sW1p, ntw)
    tW1 = dma(vW1a, sW1p, ntw, 1056, f'v_add_u32 {v(vW1a)}, 22016, {v(vW1a)}')
    setexec(-1)
    for l in sreads(1): a(l)
    for l in pvreads(1): a(l)
    a(f's_cmp_lg_u32 {sW}, 3'); a('s_cbranch_scc1 Lg1'); a.begin_cond()
    a(f'v_dot2_f32_bf16 {T0}, {v(vO)}, {v(vO+4)}, 0')
    for r in range(1, 4): a(f'v_dot2_f32_bf16 {T0}, {v(vO+r)}, {v(vO+4+r)}, {T0}')
    def wave_reduce(op, x, t):
        for m in ('quad_perm:[1,0,3,2]', 'quad_perm:[2,3,0,1]', 'row_half_mirror', 'row_mirror'):
            a(f'{op}_dpp {x}, {x}, {x} {m}{DPP}')
        for sw in (16, 32):
            a(f'v_mov_b32 {t}, {x}'); a(f'v_permlane{sw}_swap_b32 {t}, {x}'); a(f'{op} {x}, {x}, {t}')
    wave_reduce('v_add_f32', T0, T1)
    a(f'v_mul_f32 {T0}, {f2u(-LOG2E):#x}, {T0}')
    a(f'v_exp_f32 {T0}, {T0}')
    a(f'v_add_f32 {T0}, 1.0, {T0}')
    a(f'v_rcp_f32 {T0}, {T0}')
    a(f'v_mov_b32 {T1}, {GG}')
    a(f'v_sub_f32 {v(vOmg)}, 1.0, {T0}')
    a(f'v_mul_f32 {v(vOmg)}, 0x3e000000, {v(vOmg)}')
    a(f'ds_write_b32 {T1}, {T0}')
    a.end_cond('Lg1')
    a.wait(tS[2])
    for l in sreads(2): a(l)

    a.wait(tQA[0])
    a.label('Lqa_chk')
    for y in range(4):
        a.wait(tQA[y])
        a(f'ds_write2_b32 {v(vQ2w + y)}, {v(vA + 4*y)}, {v(vA + 4*y + 2)} offset0:0 offset1:1')
        a(f'v_bitop3_b32 {v(vT[y])}, {v(vA + 4*y + 1)}, {v(vA + 4*y + 3)}, {sT} bitop3:0x7e')
    a(f'v_or3_b32 {T0}, {T0}, {T1}, {T2}')
    a(f'v_or_b32 {T0}, {T0}, {T3}')
    a(f'v_cmp_ne_u32 vcc, 0, {T0}')
    a('s_cbranch_vccnz Lqa_retry')
    a.label('Lqa_ok'); retry('qa', ldqa)
    a.wait_all(lg=True)
    a('s_barrier')
    stamp('qagot')

    qrd = [f'ds_read_b128 {v(vQ + 4*k, 4)}, {v(vQ2r)} offset:{256*(k>>2) + 16*(k&3)}' for k in range(16)]
    tq = [a(l) for l in qrd[:8]]
    late = []
    late.append((f's_mul_i32 {t2}, {sW}, 4160', f's_add_u32 m0, {t2}, {R[0]}', 's_nop 0', f'global_load_lds_dwordx4 {v(vUV)}, {sWUV}{ntw}'))
    for p in range(1, 4): late.append((f's_add_u32 m0, m0, 1040', f'v_add_u32 {v(vUV)}, 8192, {v(vUV)}', f'global_load_lds_dwordx4 {v(vUV)}, {sWUV}{ntw}'))
    late.append((f's_mul_i32 {t2}, {sW}, 4224', f's_add_u32 m0, {t2}, {WO}', 's_nop 0', f'global_load_lds_dwordx4 {v(vWOa)}, {sWOp}{ntw}'))
    for p in range(1, 4): late.append((f's_add_u32 m0, m0, 1056', f'v_add_u32 {v(vWOa)}, 8192, {v(vWOa)}', f'global_load_lds_dwordx4 {v(vWOa)}, {sWOp}{ntw}'))
    pv2 = pvreads(2)
    for k in range(12):
        if k < 8: tq.append(a(qrd[8 + k]))
        a.wait(tq[k])
        for kt in range(2):
            mfma(vS + 4*kt, ac(128 + (k*2 + kt)*4, 4), v(vQ + 4*k, 4), v(vS + 4*kt, 4) if k else '0')
            if k >= 8: a(pv2.pop(0)); a(pv2.pop(0))
    for grp in late:
        for l in grp: tLate = a(l)
    a(f's_mul_i32 {t2}, {sW}, 2112'); a(f's_add_u32 m0, {t2}, {W2}')
    setexec(mFFN)
    dma(vW2a, sW2p, ntw)
    dma(vW2a, sW2p, ntw, 1056, f'v_add_u32 {v(vW2a)}, 8192, {v(vW2a)}')
    setexec(-1)
    a.wait(tS[3])
    stamp('s3')
    ts = [a(l) for l in sreads(3)]
    for k in range(12, 16):
        for kt in range(2):
            a.wait(ts[(k-12)*2 + kt])
            mfma(vS + 4*kt, ac(128 + (k*2 + kt)*4, 4), v(vQ + 4*k, 4), v(vS + 4*kt, 4))
    for r in range(4): a(f'v_cndmask_b32 {v(vE + r)}, {v(vS + r)}, {v(vS + 4 + r)}, {mKT}')
    a(f'v_max3_f32 {T0}, {v(vE)}, {v(vE+1)}, {v(vE+2)}')
    a(f'v_max_f32 {T0}, {T0}, {v(vE+3)}')
    a(f'v_max_f32_dpp {T0}, {T0}, {T0} row_ror:8{DPP}')
    for sw in (16, 32):
        a(f'v_mov_b32 {T1}, {T0}'); a(f'v_permlane{sw}_swap_b32 {T1}, {T0}'); a(f'v_max_f32 {T0}, {T0}, {T1}')
    setexec(0xff)
    a(f'ds_write_b32 {v(vMXw)}, {T0}')
    setexec(-1)
    a.wait_all(lg=True)
    a('s_barrier')
    t = a(f'ds_read_b128 {v(vS,4)}, {v(vMXr)}')
    a.wait(t)
    a(f'v_max3_f32 {T0}, {v(vS)}, {v(vS+1)}, {v(vS+2)}')
    a(f'v_max_f32 {T0}, {T0}, {v(vS+3)}')
    for r in range(4): a(f'v_sub_f32 {v(vE + r)}, {v(vE + r)}, {T0}')
    for r in range(4): a(f'v_exp_f32 {v(vE + r)}, {v(vE + r)}')
    a(f'v_cvt_pk_bf16_f32 {v(vS+4)}, {v(vE)}, {v(vE+1)}')
    a(f'v_cvt_pk_bf16_f32 {v(vS+5)}, {v(vE+2)}, {v(vE+3)}')
    a(f'ds_write_b64 {v(vPw)}, {v(vS+4,2)}')
    a(f'v_add_f32 {T0}, {v(vE)}, {v(vE+1)}')
    a(f'v_add_f32 {T1}, {v(vE+2)}, {v(vE+3)}')
    a(f'v_add_f32 {T0}, {T0}, {T1}')
    t = a(f'ds_write_b32 {v(vLSw)}, {T0}')
    a.wait(t, tW1)
    a('s_barrier')
    stamp('pbar')

    tp = [a(f'ds_read_b128 {v(vA + 4*ks, 4)}, {v(vPr)} offset:{512*ks}') for ks in range(4)]
    tl = a(f'ds_read_b128 {v(vS,4)}, {v(vLSr)}')
    tm = a(f'ds_read_b128 {v(vS+4,4)}, {v(vMXr2)}')
    pv3 = pvreads(3)
    side = [
        ('w', tm), f'v_add_f32 {T0}, {v(vS)}, {v(vS+1)}', f'v_add_f32 {T1}, {v(vS+2)}, {v(vS+3)}',
        f'v_add_f32 {v(vE+1)}, {T0}, {T1}', f'v_max3_f32 {v(vE)}, {v(vS+4)}, {v(vS+5)}, {v(vS+6)}',
        f'v_max_f32 {v(vE)}, {v(vE)}, {v(vS+7)}',
        f'v_add_f32_dpp {v(vE+1)}, {v(vE+1)}, {v(vE+1)} quad_perm:[1,0,3,2]{DPP}', None,
        f'v_add_f32_dpp {v(vE+1)}, {v(vE+1)}, {v(vE+1)} quad_perm:[2,3,0,1]{DPP}', None,
        f'v_add_f32_dpp {v(vE+1)}, {v(vE+1)}, {v(vE+1)} row_half_mirror{DPP}', None,
        ('ml',)]
    t3rd = {}
    n = 0
    for s in range(4):
        for ks in range(4):
            for b in range(2):
                a.wait(tp[ks])
                if s == 3: a.wait(t3rd[ks, b])
                d = vO + (s*2 + b)*4
                mfma(d, v(vA + 4*ks, 4), ac(((s*2 + b)*4 + ks)*4, 4), v(d, 4) if ks else '0')
                if s == 0:
                    a(pv3.pop(0)); t3rd[ks, b] = a(pv3.pop(0))
                elif side:
                    x = side.pop(0)
                    if isinstance(x, tuple) and x[0] == 'w':
                        a.wait(x[1]); x = side.pop(0)
                    if isinstance(x, tuple):
                        setexec(mML)
                        a(f'global_store_dwordx2 {v(vMLs)}, {v(vE,2)}, {sWS} sc1')
                        setexec(-1)
                    elif x: a(x)
                if s == 3 and ks == 0 and b == 0:
                    tf1 = [a(f'ds_read_b64_tr_b16 {v(vWF1 + 2*k, 2)}, {v(vTO2)} offset:{4224*(k>>1) + 512*(k&1)}') for k in range(4)]
                if s == 3 and ks >= 1:
                    sp = ks - 1
                    a(f'v_cvt_pk_bf16_f32 {v(vB + 4*b + sp)}, {v(vO + sp*8 + b)}, {v(vO + sp*8 + 4 + b)}')
    a.wait(tf1[3])
    mfma(vS, v(vXo, 4), v(vWF1, 4), '0')
    mfma(vS, v(vXo + 4, 4), v(vWF1 + 4, 4), v(vS, 4))
    a(f'v_cvt_pk_bf16_f32 {v(vB + 3)}, {v(vO + 24)}, {v(vO + 28)}')
    a(f'v_cvt_pk_bf16_f32 {v(vB + 7)}, {v(vO + 25)}, {v(vO + 29)}')
    a(f'global_store_dwordx4 {v(vOs0)}, {v(vB,4)}, {sWS} sc1')
    a(f'global_store_dwordx4 {v(vOs1)}, {v(vB+4,4)}, {sWS} sc1')
    stamp('opub')
    a(f'v_mov_b32 {v(vPub)}, {v(vS)}')
    setexec(0xffff)
    a(f'global_store_dwordx2 {v(vFs)}, {v(vPub,2)}, {sWS} sc1')
    setexec(-1)

    a.wait_all(vm=True)
    stamp('drain')
    vML = vE; vMr = vE + 2; vOg = vO
    ldml = [f'global_load_dwordx2 {v(vML,2)}, {v(vMLl)}, {sWS} sc1',
            f'global_load_dword {v(vMr)}, {v(vMLr)}, {sWS} sc1',
            f'global_load_dword {v(vMr+1)}, {v(vMLr)}, {sWS} offset:64 sc1']
    ldo = [f'global_load_dwordx4 {v(vOg + 4*u, 4)}, {v(vOl)}, {sWS} offset:{1024*u} sc1' for u in range(2)]
    for l in ldml: tML = a(l)
    for l in ldo: tO = a(l)
    ldf = [f'global_load_dwordx4 {v(vFg + 4*y, 4)}, {v(vFl)}, {sWS} offset:{1024*y} sc1' for y in range(4)]
    a(f's_cmp_eq_u32 {sW}, 3'); a(f's_cselect_b64 exec, {mFFN}, 1')
    for l in ldf: tF = a(l)
    setexec(-1)
    a('s_barrier')
    for b in range(2):
        for k in range(4):
            a(f'ds_read_b64_tr_b16 {v(vWD + 8*b + 2*k, 2)}, {v(vTR)} offset:{R[0] + 1040*4*k + 16*b}')
    a(f'v_mov_b32 {T1}, {GG}')
    tg = a(f'ds_read_b32 {v(vGate)}, {T1}')
    for k in range(8):
        a(f'ds_read_b64_tr_b16 {v(vWE + 2*k, 2)}, {v(vTO)} offset:{WO + 4224*(k>>1) + 512*(k&1)}')
    for k in range(4):
        a(f'ds_read_b64_tr_b16 {v(vWF2 + 2*k, 2)}, {v(vTO2)} offset:{8448 + 4224*(k>>1) + 512*(k&1)}')
    a.wait(tML)
    a.label('Lml_chk')
    a(f'v_max3_u32 {T0}, {v(vML)}, {v(vML+1)}, {v(vMr)}')
    a(f'v_max_u32 {T0}, {T0}, {v(vMr+1)}')
    a(f'v_cmp_eq_u32 vcc, -1, {T0}')
    a(f'v_mov_b32 {T4}, {v(vML)}')
    a('s_cbranch_vccnz Lml_retry')
    a.label('Lml_ok'); retry('ml', ldml)
    wave_reduce('v_max_f32', T4, T1)
    for u in range(2): a(f'v_sub_f32 {v(vMr+u)}, {v(vMr+u)}, {T4}')
    for u in range(2): a(f'v_exp_f32 {v(vMr+u)}, {v(vMr+u)}')
    a(f'v_sub_f32 {T5}, {v(vML)}, {T4}')
    for u in range(2): a(f'v_cvt_pk_bf16_f32 {v(vMr+u)}, {v(vMr+u)}, {v(vMr+u)}')
    a(f'v_exp_f32 {T5}, {T5}')
    for u in range(2):
        for d in range(4): a(f'v_and_b32 {v(vA + 4*u + d)}, {v(vMr+u)}, {v(vMask+d)}')
    a(f'v_cvt_pk_bf16_f32 {T5}, {v(vZero)}, {T5}')
    a.wait(tO)
    a.label('Lo_chk')
    mfma(vS, v(vA, 4), v(vOg, 4), '0')
    mfma(vS, v(vA + 4, 4), v(vOg + 4, 4), v(vS, 4))
    a(f'v_max3_u32 {T0}, {v(vOg)}, {v(vOg+1)}, {v(vOg+2)}')
    a(f'v_max3_u32 {T1}, {v(vOg+3)}, {v(vOg+4)}, {v(vOg+5)}')
    a(f'v_max3_u32 {T0}, {T0}, {v(vOg+6)}, {v(vOg+7)}')
    a(f'v_max_u32 {T0}, {T0}, {T1}')
    a(f'v_cmp_eq_u32 vcc, -1, {T0}')
    a('s_cbranch_vccnz Lo_retry')
    a.label('Lo_ok'); retry('o', ldo)
    a(f'v_mul_f32 {T6}, {T5}, {v(vML+1)}')
    setexec(mCX)
    a(f'v_cvt_pk_bf16_f32 {v(vS+4)}, {v(vS)}, {v(vS+1)}')
    a(f'v_cvt_pk_bf16_f32 {v(vS+5)}, {v(vS+2)}, {v(vS+3)}')
    a(f'ds_write_b64 {v(vCXw)}, {v(vS+4,2)}')
    setexec(-1)
    for m in ('quad_perm:[1,0,3,2]', 'quad_perm:[2,3,0,1]', 'row_half_mirror', 'row_mirror'):
        a(f'v_add_f32_dpp {T6}, {T6}, {T6} {m}{DPP}')
    a.wait_all(lg=True)
    a('s_barrier')
    stamp('ogot')

    tc = [a(f'ds_read_b128 {v(vA + 4*ks, 4)}, {v(vCXr)} offset:{64*ks}') for ks in range(2)]
    for sw in (16, 32):
        a(f'v_mov_b32 {T1}, {T6}'); a(f'v_permlane{sw}_swap_b32 {T1}, {T6}'); a(f'v_add_f32 {T6}, {T6}, {T1}')
    a(f'v_rcp_f32 {T6}, {T6}')
    for ks in range(2):
        a.wait(tc[ks])
        for b in range(2):
            mfma(vS + 4*b, v(vA + 4*ks, 4), v(vWD + 8*b + 4*ks, 4), v(vS + 4*b, 4) if ks else '0')
    a(f'v_mul_f32 {T6}, {T6}, {v(vGate)}')
    a(f'v_add_f32 {T0}, {v(vS)}, {v(vS+1)}')
    a(f'v_add_f32 {T1}, {v(vS+2)}, {v(vS+3)}')
    a(f'v_add_f32 {T2}, {v(vS+4)}, {v(vS+5)}')
    a(f'v_add_f32 {T3}, {v(vS+6)}, {v(vS+7)}')
    a(f'v_add_f32 {T0}, {T0}, {T1}')
    a(f'v_add_f32 {T2}, {T2}, {T3}')
    a(f'v_permlane16_swap_b32 {T0}, {T2}')
    a(f'v_add_f32 {T0}, {T0}, {T2}')
    a(f'v_mul_f32 {T1}, {T0}, {T6}')
    a(f'v_mul_f32_dpp {T2}, {T0}, {T6} quad_perm:[1,1,3,3]{DPP}')
    a(f'v_cvt_pk_bf16_f32 {T0}, {T1}, {T2}')
    setexec(0x55555555)
    tY = a(f'global_store_dword {v(vYs)}, {T0}, {sWS} sc1')
    setexec(-1)
    stamp('ypub')

    for r in range(4): a(f'v_mov_b32 {v(vE + r)}, 0')
    a(f's_cmp_ge_u32 {sFG}, 22'); a('s_cbranch_scc1 Lnf'); a.begin_cond()
    a(f's_cmp_lg_u32 {sW}, 3'); a('s_cbranch_scc1 Lf1'); a.begin_cond()
    a.wait(tF)
    a.label('Lf_chk')
    for y in range(4): a(f'v_bitop3_b32 {v(vT[y])}, {v(vFg + 4*y + 1)}, {v(vFg + 4*y + 3)}, {sT} bitop3:0x7e')
    a(f'v_or3_b32 {T0}, {T0}, {T1}, {T2}')
    a(f'v_or_b32 {T0}, {T0}, {T3}')
    a(f'v_cmp_ne_u32 vcc, 0, {T0}')
    a('s_cbranch_vccnz Lf_retry')
    a.label('Lf_ok'); retry('f', ldf)
    for k in range(2):
        a(f'v_add_f32 {v(vT[k])}, {v(vFg + 2*k)}, {v(vFg + 4 + 2*k)}')
        a(f'v_add_f32 {v(vT[2+k])}, {v(vFg + 8 + 2*k)}, {v(vFg + 12 + 2*k)}')
    a(f'v_add_f32 {T0}, {T0}, {T2}')
    a(f'v_add_f32 {T1}, {T1}, {T3}')
    a(f'v_permlane32_swap_b32 {T0}, {T1}')
    a(f'v_add_f32 {T0}, {T0}, {T1}')
    a(f'v_mul_f32 {T1}, {f2u(-LOG2E):#x}, {T0}')
    a(f'v_exp_f32 {T1}, {T1}')
    a(f'v_add_f32 {T1}, 1.0, {T1}')
    a(f'v_rcp_f32 {T1}, {T1}')
    a(f'v_mul_f32 {T0}, {T0}, {v(vOmg)}')
    a(f'v_mul_f32 {T0}, {T0}, {T1}')
    a(f'v_cndmask_b32 {T0}, {T0}, {v(vZero)}, {mFZ}')
    a(f'v_cvt_pk_bf16_f32 {T0}, {T0}, {T0}')
    a(f'v_lshrrev_b32 {T1}, 5, {v(vL)}')
    a(f'v_lshl_add_u32 {T1}, {T1}, 1, {v(vHw)}')
    a(f'ds_write_b16 {T1}, {T0}')
    a.wait_all(lg=True)
    a.end_cond('Lf1')
    a('s_barrier')
    th = [a(f'ds_read_b128 {v(vB + 4*ks, 4)}, {v(vHr)} offset:{64*ks}') for ks in range(2)]
    for ks in range(2):
        a.wait(th[ks])
        mfma(vE, v(vB + 4*ks, 4), v(vWF2 + 4*ks, 4), v(vE, 4) if ks else '0')
    a.end_cond('Lnf')

    a.wait_all(vm=True)
    ldy = [f'global_load_dwordx4 {v(vA + 4*ks, 4)}, {v(vYl)}, {sWS} offset:{2048*ks - 4096} sc1' for ks in range(4)]
    ty = [a(l) for l in ldy]
    a.wait(ty[0])
    a.label('Ly_chk')
    for ks in range(4):
        a.wait(ty[ks])
        mfma(vS, v(vA + 4*ks, 4), v(vWE + 4*ks, 4), v(vS, 4) if ks else v(vE, 4))
        a(f'v_max3_u32 {v(vT[ks])}, {v(vA + 4*ks)}, {v(vA + 4*ks + 1)}, {v(vA + 4*ks + 2)}')
    a(f'v_max3_u32 {T0}, {T0}, {v(vA+3)}, {v(vA+7)}')
    a(f'v_max3_u32 {T1}, {T1}, {v(vA+11)}, {v(vA+15)}')
    a(f'v_max3_u32 {T0}, {T0}, {T1}, {T2}')
    a(f'v_max_u32 {T0}, {T0}, {T3}')
    a(f'v_cmp_eq_u32 vcc, -1, {T0}')
    a('s_cbranch_vccnz Ly_retry')
    a.label('Ly_ok'); retry('y', ldy)
    a(f'v_add_f32 {T0}, {v(vS)}, {v(vS+1)}')
    a(f'v_add_f32 {T1}, {v(vS+2)}, {v(vS+3)}')
    a(f'v_add_f32 {T0}, {T0}, {T1}')
    a(f'v_mov_b32 {T1}, {T0}')
    a(f'v_permlane16_swap_b32 {T0}, {T1}')
    a(f'v_add_f32 {T0}, {T0}, {T1}')
    setexec(0xffff)
    a(f'global_store_dword {v(vRs)}, {T0}, {sWS} sc1')
    setexec(-1)
    stamp('rpub')

    a(f's_lshl2_add_u32 {t3}, {sJ}, {sW}')
    a(f's_cmp_lg_u32 {t3}, {sH}'); a('s_cbranch_scc1 Lfin'); a.begin_cond()
    if o['rpoll'] == 'atomic':
        ldr = [f'global_atomic_or_x2 {v(vB + 2*y, 2)}, {v(vRl)}, {v(vZero,2)}, {sWS} offset:{2048*y - 4096} sc0 sc1' for y in range(4)]
    else:
        a.wait_all(vm=True)
        ldr = [f'global_load_dwordx2 {v(vB + 2*y, 2)}, {v(vRl)}, {sWS} offset:{2048*y - 4096} sc1' for y in range(4)]
    for l in ldr: a(l)
    a.wait_all(vm=True)
    a.label('Lr_chk')
    a(f'v_max3_u32 {T2}, {v(vB)}, {v(vB+1)}, {v(vB+2)}')
    a(f'v_max3_u32 {T3}, {v(vB+3)}, {v(vB+4)}, {v(vB+5)}')
    a(f'v_max3_u32 {T2}, {T2}, {v(vB+6)}, {v(vB+7)}')
    a(f'v_max_u32 {T2}, {T2}, {T3}')
    a(f'v_cmp_eq_u32 vcc, -1, {T2}')
    a(f'v_add_f32 {T0}, {v(vB)}, {v(vB+2)}')
    a('s_cbranch_vccnz Lr_retry')
    a.label('Lr_ok'); retry('r', ldr)
    a(f'v_add_f32 {T1}, {v(vB+1)}, {v(vB+3)}')
    a(f'v_add_f32 {T2}, {v(vB+4)}, {v(vB+6)}')
    a(f'v_add_f32 {T3}, {v(vB+5)}, {v(vB+7)}')
    a(f'v_add_f32 {T0}, {T0}, {T2}')
    a(f'v_add_f32 {T1}, {T1}, {T3}')
    a(f'v_permlane32_swap_b32 {T0}, {T1}')
    a(f'v_add_f32 {T0}, {T0}, {T1}')
    a(f'v_add_f32_dpp {T0}, {T0}, {T0} row_ror:8{DPP}')
    a(f'v_mov_b32 {T1}, {T0}')
    a(f'v_permlane16_swap_b32 {T0}, {T1}')
    a(f'v_add_f32 {T0}, {T0}, {T1}')
    a(f'v_cvt_pk_bf16_f32 {T0}, {T0}, {T0}')
    a('s_mov_b32 exec_lo, 0xff'); a('s_mov_b32 exec_hi, 0xff')
    a(f'global_store_short {v(vOut)}, {T0}, {sOUT}')
    a(f's_cmp_lg_u32 {t3}, 0'); a('s_cbranch_scc1 Lfin')
    setexec(1)
    a(f'global_store_dword {v(vZero)}, {v(vPub+1)}, {sWS} sc1')
    a.end_cond('Lfin')
    if o['stamps']:
        stamp('end')
        setexec(1)
        a('s_waitcnt lgkmcnt(0)')
        a(f's_lshl2_add_u32 {t2}, s2, {sW}'); a(f's_lshl_b32 {t2}, {t2}, 7'); a(f's_add_u32 {t2}, {t2}, {STAMP}')
        a(f'v_mov_b32 {T0}, {t2}')
        for k in range(nst[0]):
            a(f'v_mov_b32 {T1}, s{STAMP0 + 2*k}')
            a(f'global_store_dword {T0}, {T1}, {sWS} offset:{4*k}')
        a(f'v_mov_b32 {T1}, {sTry}')
        a(f'global_store_dword {T0}, {T1}, {sWS} offset:124')
    a.label('Lend')
    a('s_endpgm')
    a.tail.append('Lcode_end:')
    hdr = ''.join(l for l in open(f'cdna_kernels/{NAME}.s.ref').readlines()[:16])
    extra = f'; stamps={",".join(names)}\n' if o['stamps'] else ''
    return f"""{hdr}{extra}; @launch grid=(256,1,1) block=(256,1,1) lds={LDS}
.amdgcn_target "amdgcn-amd-amdhsa--gfx950"
.text
.globl {NAME}_kernel
.p2align 8
.type {NAME}_kernel,@function
{NAME}_kernel:
{a.text()}
.section .rodata,"a"
.p2align 6
.amdhsa_kernel {NAME}_kernel
  .amdhsa_next_free_vgpr 512
  .amdhsa_next_free_sgpr 102
  .amdhsa_accum_offset 256
  .amdhsa_group_segment_fixed_size 0
  .amdhsa_kernarg_size 104
  .amdhsa_user_sgpr_count 2
  .amdhsa_user_sgpr_kernarg_segment_ptr 1
  .amdhsa_system_sgpr_workgroup_id_x 1
.end_amdhsa_kernel
""", nv[0], a.pads

if __name__ == '__main__':
    kw = {}
    for x in sys.argv[2:]:
        k, val = x.split('=')
        kw[k] = int(val) if val.lstrip('-').isdigit() else val
    txt, nvg, pads = gen(**kw)
    open(sys.argv[1], 'w').write(txt)
    print('vgprs', nvg, 'pads', pads)
```

```python
import sys, struct, math
from asmlib import Asm
NAME = 'gated_mix__compressed_kv_cla__dense_activation_silu__decode'
DEF = dict(rot=1, stamps=0, ntw=1, ntc=0, order='a', rpoll='atomic', maxtry=20000, probe='')
def f2u(x): return struct.unpack('<I', struct.pack('<f', x))[0]
LOG2E = 1.4426950408889634

QB, QA, FB, PB, OB = 0x10000, 0x30000, 0x40000, 0x80000, 0x100000
STAMP = 128 << 20
R = [0, 33536, 66816, 100096]
WO = 16640
QI2 = 133376; CX = QI2
W1 = 141824; W2 = 150272
QI = 158720; PI = QI
MX = 160960; LS = 161088; HH = 162240; GG = 162368
LDS = 162432

def gen(**kw):
    o = dict(DEF); o.update(kw)
    a = Asm()
    ntw = ' nt' if o['ntw'] else ''
    ntc = ' nt' if o['ntc'] else ''
    sX, sCKV, sWQ, sWUK, sWUV, sWOp, sW1p, sW2p, sGW, sOUT, sWS = 's[4:5]', 's[6:7]', 's[8:9]', 's[10:11]', 's[12:13]', 's[14:15]', 's[18:19]', 's[20:21]', 's[22:23]', 's[24:25]', 's[28:29]'
    sW, sT, sH, sJ, sXCD, sI, sHG, sKB, sBX, sFG, sFC = 's30', 's31', 's32', 's33', 's34', 's35', 's36', 's37', 's38', 's39', 's40'
    sM8 = 's41'
    sCK = ['s[42:43]', 's[44:45]', 's[46:47]', 's[48:49]']
    mN1, mQST, mKT, mCX, mML, mFFN, mFZ = 's[50:51]', 's[52:53]', 's[54:55]', 's[56:57]', 's[58:59]', 's[60:61]', 's[62:63]'
    t0, t1, t2, t3 = 's64', 's65', 's66', 's67'
    sTry = 's68'
    STAMP0 = 70
    nst = [0]; names = []
    def stamp(name):
        if o['stamps']:
            r = STAMP0 + 2 * nst[0]; assert r <= 100
            a(f's_memrealtime s[{r}:{r+1}]'); nst[0] += 1; names.append(name)
        if o['probe'] == name: a('s_memrealtime s[70:71]')
    nv = [1]
    def V(n=1, al=1):
        r = (nv[0] + al - 1) // al * al; nv[0] = r + n; assert nv[0] <= 256, nv[0]; return r
    def v(r, n=1): return f'v{r}' if n == 1 else f'v[{r}:{r+n-1}]'
    def ac(r, n=1): return f'a{r}' if n == 1 else f'a[{r}:{r+n-1}]'
    vL, vG, vN, vSW, vR2, vQ2, vN7, vNH = [V() for _ in range(8)]
    vT = [V() for _ in range(7)]
    vW = V(4); vCK = V(8); vX = V(); vP = V()
    vSA, vSA2, vTR, vTR2, vTO, vTO2 = [V() for _ in range(6)]
    vQBs, vQBl, vQIw, vQIr, vQAs, vQAl, vQ2r = [V() for _ in range(7)]
    vQ2w = V(4)
    vMXw, vMXr, vMXr2, vPw, vPr, vLSw, vLSr, vMLs, vOs0, vOs1, vOl, vMLl, vMLr = [V() for _ in range(13)]
    vCXw, vCXr, vUV, vWOa, vW1a, vW2a, vFs, vFl, vHw, vHr, vYs, vYl, vRs, vRl, vOut = [V() for _ in range(15)]
    vMask = V(4); vGate = V(); vOmg = V(); vScl = V(); vZero = V(2, 2)
    vNeg = V(4, 4); vXo = V(8, 4)
    vQ = V(64, 4); vO = V(32, 4); vS = V(8, 4); vA = V(16, 4); vB = V(16, 4); vE = V(4, 4); vPub = V(8, 4)
    vWD = vQ; vWE = vQ + 16; vWF1 = vQ + 32; vWF2 = vQ + 40; vFg = vQ + 48
    MF = 'v_mfma_f32_16x16x32_bf16'
    DPP = ' row_mask:0xf bank_mask:0xf'
    def mfma(d, x, y, c): a(f'{MF} {v(d,4)}, {x}, {y}, {c}')
    def setexec(m):
        if isinstance(m, str): a(f's_mov_b64 exec, {m}')
        else: a(f's_mov_b64 exec, {m:#x}' if m > 64 else f's_mov_b64 exec, {m}')
    def dma(vaddr, base, flag, m0step=None, filler=None):
        if m0step is not None: a(f's_add_u32 m0, m0, {m0step}')
        if filler: a(filler)
        return a(f'global_load_lds_dwordx4 {v(vaddr)}, {base}{flag}')
    def retry(name, loads):
        a.tail += [f'L{name}_retry:', '  s_nop 7', f'  s_add_u32 {sTry}, {sTry}, 1', f'  s_cmp_gt_u32 {sTry}, {o["maxtry"]}', f'  s_cbranch_scc1 L{name}_ok', '  s_waitcnt lgkmcnt(0)']
        a.tail += ['  ' + l for l in loads]
        a.tail += ['  s_waitcnt vmcnt(0)', '  s_nop 1', f'  s_branch L{name}_chk']

    a('s_load_dwordx16 s[4:19], s[0:1], 0')
    a('s_load_dwordx8 s[20:27], s[0:1], 64')
    a('s_load_dwordx2 s[28:29], s[0:1], 96')
    a('s_cmp_ge_u32 s2, 256')
    a('s_cbranch_scc1 Lend')
    a('s_getpc_b64 s[64:65]')
    a.label('Lpc')
    a(f'v_lshlrev_b32 {v(vT[0])}, 7, v0')
    a(f'v_min_u32 {v(vT[0])}, Lcode_end-Lpc-4, {v(vT[0])}')
    a(f'global_load_dword {v(vT[1])}, {v(vT[0])}, s[64:65]')
    stamp('start')
    a(f'v_lshrrev_b32 {v(vT[2])}, 6, v0')
    a(f'v_and_b32 {v(vL)}, 63, v0')
    a(f'v_readfirstlane_b32 {sW}, {v(vT[2])}')
    a(f's_and_b32 {sXCD}, s2, 7')
    a(f's_lshr_b32 {sI}, s2, 3')
    a(f's_lshr_b32 {t2}, {sI}, 3')
    a(f's_lshl2_add_u32 {sH}, {sXCD}, {t2}')
    a(f's_and_b32 {sJ}, {sI}, 7')
    a(f's_lshl3_add_u32 {sFG}, {t2}, {sXCD}')
    a(f'v_lshrrev_b32 {v(vG)}, 4, {v(vL)}')
    a(f'v_and_b32 {v(vN)}, 15, v0')
    a(f'v_lshlrev_b32 {v(vSW)}, 2, {v(vG)}')
    a(f'v_xor_b32 {v(vSW)}, {v(vSW)}, {v(vN)}')
    a(f'v_lshlrev_b32 {v(vSW)}, 4, {v(vSW)}')
    a(f's_lshr_b32 {t2}, {sW}, 1')
    a(f's_lshl_b32 {t2}, {t2}, 3')
    a(f's_and_b32 {t3}, {sW}, 1')
    a(f's_add_u32 {t2}, {t2}, {t3}')
    a(f's_lshl4_add_u32 {t2}, {sJ}, {t2}')
    a(f's_lshl_b32 {t2}, {t2}, 15')
    a(f's_lshl_b32 {t3}, {sH}, 8')
    a(f's_add_u32 {t2}, {t2}, {t3}')
    a(f'v_lshl_add_u32 {v(vW)}, {v(vG)}, 13, {v(vSW)}')
    a(f'v_add_u32 {v(vW)}, {t2}, {v(vW)}')
    a(f's_mul_i32 {sM8}, {sW}, 8320')
    a(f's_add_u32 m0, {sM8}, {R[3] + 4160}')
    a(f's_lshl_b32 {t3}, {sJ}, 7')
    a(f'v_lshl_add_u32 {v(vX)}, {v(vG)}, 4, {t3}')
    a(f's_lshl3_add_u32 {sBX}, {sH}, {sJ}')
    a(f's_lshl_b32 {t3}, {sBX}, 10')
    a(f's_add_u32 {t3}, {t3}, {PB}')
    a(f'v_lshl_add_u32 {v(vP)}, v0, 2, {t3}')
    for r in range(4): a(f'v_mov_b32 {v(vNeg+r)}, -1')
    for p in range(1, 4): a(f'v_add_u32 {v(vW+p)}, {65536*p}, {v(vW)}')
    a(f's_and_b32 {sHG}, {sI}, 3')
    a(f's_lshr_b32 {t3}, {sI}, 2')
    a(f's_lshl3_add_u32 {sKB}, {sXCD}, {t3}')
    a(f'v_lshl_add_u32 {v(vCK)}, {v(vG)}, 10, {v(vSW)}')
    a(f's_lshl_b32 {t3}, {sW}, 15')
    a(f'v_add_u32 {v(vCK)}, {t3}, {v(vCK)}')
    a(f's_mov_b32 {sTry}, 0')
    a('s_waitcnt lgkmcnt(0)')
    a(f's_load_dword {sT}, {sWS}, 0')
    for p in range(4): tWQ = dma(vW + p, sWQ, ntw, 1040 if p else None)
    a(f'global_load_dwordx4 {v(vXo,4)}, {v(vX)}, {sX}')
    a(f'global_load_dwordx4 {v(vXo+4,4)}, {v(vX)}, {sX} offset:64')
    tP1 = a(f'global_store_dword {v(vP)}, {v(vNeg)}, {sWS} sc1')
    a(f's_lshl_b32 {t2}, {sKB}, 17')
    for s in range(4):
        lo = 42 + 2 * s
        if o['rot']:
            if s: a(f's_add_u32 {t3}, {sHG}, {s}'); a(f's_and_b32 {t3}, {t3}, 3'); a(f's_lshl_b32 {t3}, {t3}, 8')
            else: a(f's_lshl_b32 {t3}, {sHG}, 8')
            a(f's_add_u32 {t3}, {t3}, {t2}')
        else:
            a(f's_add_u32 {t3}, {t2}, {256*s}')
        a(f's_add_u32 s{lo}, s6, {t3}'); a(f's_addc_u32 s{lo+1}, s7, 0')
    first_ck = [True]
    def stage(s):
        a(f's_add_u32 m0, {sM8}, {R[s]}')
        for p in range(8):
            fill = f'v_add_u32 {v(vCK+p)}, {4096*p}, {v(vCK)}' if (first_ck[0] and p) else None
            t = dma(vCK + p, sCK[s], ntc, 1040 if p else None, fill)
        first_ck[0] = False
        return t
    def wuk():
        a(f's_add_u32 m0, {sM8}, {R[3]}')
        for p in range(4): t = dma(vW + p, sWUK, ntw, 1040 if p else None)
        return t
    tS = [None] * 4
    a('s_barrier')
    if o['order'] == 'a':
        tS[0] = stage(0); a('s_barrier'); tUK = wuk()
    else:
        tUK = wuk(); a('s_barrier'); tS[0] = stage(0)
    stamp('issued')

    a(f'v_bfe_u32 {v(vR2)}, v0, 2, 2')
    a(f'v_and_b32 {v(vQ2)}, 3, v0')
    a(f'v_and_b32 {v(vN7)}, 7, v0')
    a(f'v_bfe_u32 {v(vNH)}, v0, 3, 1')
    T0, T1, T2, T3, T4, T5, T6 = [v(x) for x in vT]
    a(f'v_mul_u32_u24 {T0}, 1040, {v(vG)}')
    a(f'v_lshl_add_u32 {T0}, {v(vR2)}, 8, {T0}')
    a(f'v_xor_b32 {T2}, {sW}, {v(vR2)}')
    a(f'v_lshl_add_u32 {T0}, {T2}, 6, {T0}')
    a(f'v_and_b32 {T2}, 2, v0')
    a(f'v_lshl_add_u32 {T0}, {T2}, 4, {T0}')
    a(f'v_and_b32 {T2}, 1, v0')
    a(f'v_lshl_add_u32 {v(vTR)}, {T2}, 3, {T0}')
    a(f'v_add_u32 {v(vTR2)}, {R[2]}, {v(vTR)}')
    a(f'v_mul_u32_u24 {T0}, 1040, {v(vR2)}')
    a(f'v_lshl_add_u32 {T0}, {v(vQ2)}, 8, {T0}')
    a(f'v_xor_b32 {T2}, {v(vG)}, {v(vQ2)}')
    a(f'v_lshl_add_u32 {T0}, {T2}, 6, {T0}')
    a(f'v_add_u32 {v(vSA)}, {sM8}, {T0}')
    a(f'v_add_u32 {v(vSA2)}, {R[2]}, {v(vSA)}')
    a(f's_lshl_b32 {t2}, {sBX}, 13'); a(f's_lshl_b32 {t3}, {sW}, 11'); a(f's_add_u32 {t2}, {t2}, {t3}'); a(f's_add_u32 {t2}, {t2}, {OB}')
    a(f'v_lshl_add_u32 {v(vOl)}, {v(vL)}, 4, {t2}')
    a(f'global_store_dwordx4 {v(vOl)}, {v(vNeg,4)}, {sWS} sc1')
    tP2 = a(f'global_store_dwordx4 {v(vOl)}, {v(vNeg,4)}, {sWS} offset:1024 sc1')
    a(f'v_lshlrev_b32 {T6}, 4, {v(vL)}')
    a(f's_cmp_eq_u32 {sW}, 3'); a('s_cselect_b64 exec, -1, 1')
    a(f'global_load_dwordx4 {v(vO,4)}, {T6}, {sX}')
    a(f'global_load_dwordx4 {v(vO+4,4)}, {T6}, {sGW}')
    setexec(-1)
    a(f's_lshl_b32 {t2}, {sBX}, 9'); a(f's_lshl_b32 {t3}, {sW}, 7'); a(f's_add_u32 {t2}, {t2}, {t3}'); a(f's_add_u32 {t2}, {t2}, {QB}')
    a(f'v_lshlrev_b32 {T0}, 5, {v(vG)}')
    a(f'v_lshl_add_u32 {T0}, {v(vN)}, 4, {T0}')
    a(f'v_add_u32 {v(vQBs)}, {t2}, {T0}')
    a(f's_lshl_b32 {t2}, {sH}, 12'); a(f's_add_u32 {t2}, {t2}, {QB}')
    a(f'v_lshl_add_u32 {v(vQBl)}, v0, 4, {t2}')
    a(f'v_lshrrev_b32 {T0}, 5, v0')
    a(f'v_and_b32 {T2}, 3, {T0}')
    a(f'v_lshlrev_b32 {T3}, 8, {T0}')
    a(f'v_lshl_add_u32 {T3}, {T2}, 4, {T3}')
    a(f'v_and_b32 {T2}, 4, {T0}')
    a(f'v_lshl_add_u32 {T3}, {T2}, 5, {T3}')
    a(f'v_and_b32 {T2}, 28, v0')
    a(f'v_lshl_add_u32 {T3}, {T2}, 3, {T3}')
    a(f'v_and_b32 {T2}, 1, v0')
    a(f'v_lshl_add_u32 {T3}, {T2}, 4, {T3}')
    a(f'v_and_b32 {T2}, 2, v0')
    a(f'v_lshl_add_u32 {T3}, {T2}, 2, {T3}')
    a(f'v_add_u32 {v(vQIw)}, {QI}, {T3}')
    a(f'v_and_b32 {T0}, 4, v0')
    a(f'v_lshlrev_b32 {T0}, 5, {T0}')
    a(f'v_lshl_add_u32 {T0}, {v(vQ2)}, 4, {T0}')
    a(f'v_lshl_add_u32 {T0}, {v(vG)}, 6, {T0}')
    a(f'v_lshl_add_u32 {T2}, {v(vN7)}, 8, {T0}')
    a(f'v_add_u32 {v(vQIr)}, {QI}, {T2}')
    a(f'v_lshl_add_u32 {T2}, {v(vN7)}, 10, {T0}')
    a(f'v_add_u32 {v(vQ2r)}, {QI2}, {T2}')
    a(f's_lshl_b32 {t2}, {sBX}, 8'); a(f's_lshr_b32 {t3}, {sW}, 1'); a(f's_lshl_b32 {t3}, {t3}, 7'); a(f's_add_u32 {t2}, {t2}, {t3}')
    a(f's_and_b32 {t1}, {sW}, 1'); a(f's_lshl4_add_u32 {t2}, {t1}, {t2}'); a(f's_add_u32 {t2}, {t2}, {QA}')
    a(f'v_lshlrev_b32 {T0}, 5, {v(vR2)}')
    a(f'v_lshl_add_u32 {T0}, {v(vQ2)}, 2, {T0}')
    a(f'v_add_u32 {v(vQAs)}, {t2}, {T0}')
    a(f's_lshl2_add_u32 {t2}, {sHG}, {sW}'); a(f's_lshl_b32 {t2}, {t2}, 12'); a(f's_add_u32 {t2}, {t2}, {QA}')
    a(f'v_lshl_add_u32 {v(vQAl)}, {v(vL)}, 4, {t2}')
    a(f's_lshl_b32 {t2}, {sW}, 11'); a(f's_add_u32 {t2}, {t2}, {t3}'); a(f's_lshl_b32 {t1}, {t1}, 5'); a(f's_add_u32 {t2}, {t2}, {t1}'); a(f's_add_u32 {t2}, {t2}, {QI2}')
    a(f'v_and_b32 {T0}, 31, v0')
    a(f'v_lshl_add_u32 {T0}, {T0}, 3, {t2}')
    a(f'v_lshrrev_b32 {T2}, 5, {v(vL)}')
    if o['rot']:
        a(f'v_subrev_u32 {T2}, {sHG}, {T2}')
        a(f'v_and_b32 {T2}, 3, {T2}')
    a(f'v_lshl_add_u32 {v(vQ2w)}, {T2}, 8, {T0}')
    a(f'v_xor_b32 {T2}, 2, {T2}')
    a(f'v_lshl_add_u32 {v(vQ2w+1)}, {T2}, 8, {T0}')
    a(f'v_add_u32 {v(vQ2w+2)}, 1040, {v(vQ2w)}')
    a(f'v_add_u32 {v(vQ2w+3)}, 1040, {v(vQ2w+1)}')
    a(f'v_lshlrev_b32 {T0}, 4, {v(vN7)}')
    a(f'v_add_u32 {v(vMXr)}, {MX}, {T0}')
    a(f's_lshl_b32 {t2}, {sW}, 2')
    a(f'v_add_u32 {v(vMXw)}, {t2}, {v(vMXr)}')
    a(f'v_lshrrev_b32 {T4}, 3, {v(vL)}')
    a(f'v_lshlrev_b32 {T2}, 4, {T4}')
    a(f'v_add_u32 {v(vMXr2)}, {MX}, {T2}')
    a(f'v_lshl_add_u32 {T2}, {v(vG)}, 7, {T0}')
    a(f'v_lshl_add_u32 {T2}, {v(vNH)}, 3, {T2}')
    a(f's_lshl_b32 {t2}, {sW}, 9'); a(f's_add_u32 {t2}, {t2}, {PI}')
    a(f'v_add_u32 {v(vPw)}, {t2}, {T2}')
    a(f'v_lshlrev_b32 {T2}, 5, {v(vNH)}')
    a(f'v_xor_b32 {T2}, {T2}, {T0}')
    a(f'v_lshl_add_u32 {T2}, {v(vG)}, 7, {T2}')
    a(f'v_add_u32 {v(vPr)}, {PI}, {T2}')
    a(f'v_mul_u32_u24 {T2}, 144, {v(vN7)}')
    a(f'v_lshl_add_u32 {T2}, {T4}, 2, {T2}')
    a(f's_lshl_b32 {t2}, {sW}, 5'); a(f's_add_u32 {t2}, {t2}, {LS}')
    a(f'v_add_u32 {v(vLSw)}, {t2}, {T2}')
    a(f'v_mul_u32_u24 {T2}, 144, {T4}')
    a(f'v_add_u32 {T2}, {T2}, {T0}')
    a(f'v_add_u32 {v(vLSr)}, {LS}, {T2}')
    a(f's_lshl_b32 {t2}, {sHG}, 16'); a(f's_lshl3_add_u32 {t2}, {sKB}, {t2}'); a(f's_add_u32 {t2}, {t2}, {PB}')
    a(f'v_lshl_add_u32 {v(vMLs)}, {v(vL)}, 10, {t2}')
    a(f's_lshl_b32 {t2}, {sHG}, 19'); a(f's_lshl_b32 {t3}, {sW}, 14'); a(f's_add_u32 {t2}, {t2}, {t3}')
    a(f's_lshl_b32 {t3}, {sKB}, 7'); a(f's_add_u32 {t2}, {t2}, {t3}'); a(f's_add_u32 {t2}, {t2}, {OB}')
    a(f'v_and_b32 {T5}, 1, {v(vG)}')
    a(f'v_lshl_add_u32 {T2}, {T5}, 18, {T0}')
    a(f'v_and_b32 {T3}, 32, v0')
    a(f'v_lshl_add_u32 {T2}, {T3}, 12, {T2}')
    a(f'v_lshl_add_u32 {T2}, {v(vNH)}, 13, {T2}')
    a(f'v_add_u32 {v(vOs0)}, {t2}, {T2}')
    a(f'v_add_u32 {v(vOs1)}, 65536, {v(vOs0)}')
    a(f's_lshl_b32 {t2}, {sBX}, 10'); a(f's_add_u32 {t2}, {t2}, {PB}')
    a(f'v_lshl_add_u32 {v(vMLl)}, {v(vL)}, 3, {t2}')
    a(f's_lshl_b32 {t3}, {sW}, 7'); a(f's_add_u32 {t2}, {t2}, {t3}')
    a(f'v_lshl_add_u32 {v(vMLr)}, {T4}, 3, {t2}')
    a(f'v_mul_u32_u24 {T2}, 160, {v(vNH)}')
    a(f'v_add_u32 {T2}, {T2}, {T0}')
    a(f'v_lshl_add_u32 {T2}, {T5}, 3, {T2}')
    a(f's_mul_i32 {t2}, {sW}, 320'); a(f's_add_u32 {t2}, {t2}, {CX}')
    a(f'v_add_u32 {v(vCXw)}, {t2}, {T2}')
    a(f'v_mul_u32_u24 {T2}, 160, {v(vN7)}')
    a(f'v_lshl_add_u32 {T2}, {v(vG)}, 4, {T2}')
    a(f'v_add_u32 {v(vCXr)}, {CX}, {T2}')
    a(f's_and_b32 {t2}, {sW}, 1'); a(f's_lshl_b32 {t2}, {t2}, 1')
    if o['rot']:
        a(f's_lshr_b32 {t3}, {sH}, 3'); a(f's_add_u32 {t2}, {t2}, {t3}')
    a(f'v_lshrrev_b32 {T2}, 1, {v(vG)}')
    a(f'v_add_u32 {T2}, {t2}, {T2}')
    a(f'v_and_b32 {T2}, 3, {T2}')
    a(f'v_lshl_add_u32 {T2}, {T2}, 20, {v(vSW)}')
    a(f'v_lshl_add_u32 {T2}, {T5}, 16, {T2}')
    a(f's_lshr_b32 {t2}, {sW}, 1'); a(f's_lshl2_add_u32 {t2}, {sJ}, {t2}'); a(f's_lshl_b32 {t2}, {t2}, 15')
    a(f's_lshl_b32 {t3}, {sH}, 8'); a(f's_add_u32 {t2}, {t2}, {t3}')
    a(f'v_add_u32 {v(vUV)}, {t2}, {T2}')
    a(f'v_lshlrev_b32 {T2}, 6, {T5}')
    a(f'v_xor_b32 {T2}, {T2}, {T0}')
    a(f'v_lshl_add_u32 {T3}, {T4}, 10, {T2}')
    a(f's_lshl2_add_u32 {t2}, {sH}, {sW}'); a(f's_lshl_b32 {t2}, {t2}, 15'); a(f's_lshl_b32 {t1}, {sJ}, 7'); a(f's_add_u32 {t2}, {t2}, {t1}')
    a(f'v_add_u32 {v(vWOa)}, {t2}, {T3}')
    a(f's_lshl_b32 {sFC}, {sFG}, 6'); a(f's_min_u32 {sFC}, {sFC}, 1312')
    a(f's_lshl4_add_u32 {t2}, {sW}, {sFC}'); a(f's_lshl_b32 {t2}, {t2}, 10'); a(f's_add_u32 {t2}, {t2}, {t1}')
    a(f'v_add_u32 {v(vW2a)}, {t2}, {T3}')
    a(f'v_mul_u32_u24 {T3}, 2752, {T4}')
    a(f'v_add_u32 {T3}, {T3}, {T2}')
    a(f's_lshl2_add_u32 {t2}, {sJ}, {sW}'); a(f's_mul_i32 {t2}, {t2}, {16*2752}'); a(f's_lshl1_add_u32 {t2}, {sFC}, {t2}')
    a(f'v_add_u32 {v(vW1a)}, {t2}, {T3}')
    a(f'v_mul_u32_u24 {T2}, 1056, {v(vG)}')
    a(f'v_lshl_add_u32 {T2}, {v(vR2)}, 7, {T2}')
    a(f'v_and_b32 {T3}, 2, {v(vR2)}')
    a(f'v_xor_b32 {T3}, {sW}, {T3}')
    a(f'v_lshl_add_u32 {T2}, {T3}, 5, {T2}')
    a(f'v_lshl_add_u32 {v(vTO)}, {v(vQ2)}, 3, {T2}')
    a(f'v_add_u32 {v(vTO2)}, {W1}, {v(vTO)}')
    a(f's_lshl_b32 {t2}, {sFG}, 12'); a(f's_add_u32 {t2}, {t2}, {FB}')
    a(f'v_lshl_add_u32 {v(vFl)}, {v(vL)}, 4, {t2}')
    a(f's_lshl2_add_u32 {t3}, {sJ}, {sW}'); a(f's_lshl_b32 {t1}, {t3}, 7'); a(f's_add_u32 {t2}, {t2}, {t1}')
    a(f'v_lshl_add_u32 {v(vFs)}, {v(vN)}, 3, {t2}')
    a(f'v_and_b32 {T2}, 31, v0')
    a(f'v_lshlrev_b32 {T3}, 2, {T2}')
    a(f'v_add_u32 {v(vHw)}, {HH}, {T3}')
    a(f'v_lshlrev_b32 {T3}, 4, {v(vG)}')
    a(f'v_add_u32 {v(vHr)}, {HH}, {T3}')
    a(f's_lshl_b32 {t2}, {t3}, 5')
    a(f'v_lshrrev_b32 {T1}, 5, {v(vL)}')
    a(f'v_lshlrev_b32 {T3}, 1, {T1}')
    a(f'v_lshl_add_u32 {T3}, {v(vN7)}, 2, {T3}')
    a(f'v_add_u32 {v(vOut)}, {t2}, {T3}')
    a(f's_lshl_b32 {t2}, {t3}, 13'); a(f's_add_u32 {t2}, {t2}, {PB + 768}')
    a(f'v_lshlrev_b32 {T3}, 3, {T2}')
    a(f'v_lshl_add_u32 {T3}, {T1}, 10, {T3}')
    a(f's_add_u32 {t1}, {t2}, 4096')
    a(f'v_add_u32 {v(vRl)}, {t1}, {T3}')
    a(f's_lshr_b32 {t1}, {sH}, 2'); a(f's_lshl_b32 {t1}, {t1}, 10'); a(f's_add_u32 {t2}, {t2}, {t1}')
    a(f's_and_b32 {t1}, {sH}, 3'); a(f's_lshl_b32 {t1}, {t1}, 6'); a(f's_add_u32 {t2}, {t2}, {t1}')
    a(f'v_lshl_add_u32 {v(vRs)}, {v(vN)}, 2, {t2}')
    a(f's_lshl_b32 {t2}, {sH}, 13'); a(f's_add_u32 {t2}, {t2}, {PB + 512}')
    a(f'v_lshl_add_u32 {T3}, {T5}, 7, {T0}')
    a(f'v_lshl_add_u32 {T3}, {T1}, 10, {T3}')
    a(f's_add_u32 {t1}, {t2}, 4096')
    a(f'v_add_u32 {v(vYl)}, {t1}, {T3}')
    a(f's_lshl_b32 {t1}, {sW}, 11'); a(f's_add_u32 {t2}, {t2}, {t1}'); a(f's_lshl4_add_u32 {t2}, {sJ}, {t2}')
    a(f'v_lshlrev_b32 {T3}, 1, {v(vN7)}')
    a(f'v_lshl_add_u32 {T3}, {T5}, 7, {T3}')
    a(f'v_lshl_add_u32 {T3}, {v(vNH)}, 10, {T3}')
    a(f'v_add_u32 {v(vYs)}, {t2}, {T3}')
    a(f'v_and_b32 {T2}, 1, v0')
    a(f'v_lshlrev_b32 {T2}, 4, {T2}')
    a(f's_mov_b32 {t2}, 0xffff')
    a(f'v_lshlrev_b32 {T2}, {T2}, {t2}')
    a(f'v_lshrrev_b32 {T3}, 1, {v(vN7)}')
    for d in range(4):
        a(f'v_cmp_eq_u32 vcc, {d}, {T3}')
        a(f'v_cndmask_b32 {v(vMask+d)}, 0, {T2}, vcc')
    a(f'v_mov_b32 {v(vScl)}, {f2u(LOG2E / math.sqrt(128.0)):#x}')
    a(f'v_mov_b32 {v(vZero)}, 0'); a(f'v_mov_b32 {v(vZero+1)}, 0')
    a('s_mov_b32 s50, 0x00020002'); a('s_mov_b32 s51, s50')
    a('s_mov_b32 s52, 0x00030003'); a('s_mov_b32 s53, s52')
    a('s_mov_b32 s54, 0xff00ff00'); a('s_mov_b32 s55, s54')
    a('s_mov_b32 s56, 0x00ff00ff'); a('s_mov_b32 s57, s54')
    a(f's_lshl_b32 {t3}, {sW}, 4'); a(f's_mov_b64 {mML}, 0xffff'); a(f's_lshl_b64 {mML}, {mML}, {t3}')
    a(f's_cmp_lt_u32 {sFG}, 22'); a(f's_cselect_b64 {mFFN}, -1, 1')
    a(f's_cmp_eq_u32 {sFG}, 21'); a('s_cselect_b32 s62, 0xffff, 0'); a('s_mov_b32 s63, s62')
    a('s_waitcnt lgkmcnt(0)')
    a(f's_add_u32 {sT}, {sT}, 0x9e3779b1')
    a(f'v_mov_b32 {v(vPub+1)}, {sT}'); a(f'v_mov_b32 {v(vPub+3)}, {sT}')
    stamp('setup')

    a.wait(tP1)
    a('s_barrier')
    stamp('wq')
    tr = {}
    for b in range(2):
        for ks in range(2):
            for u in range(2):
                tr[b, ks] = a(f'ds_read_b64_tr_b16 {v(vA + 8*b + 4*ks + 2*u, 2)}, {v(vTR2)} offset:{33280 + 1040*(16*ks + 8*u + 4) + 16*b}')
    for b in range(2):
        for ks in range(2):
            a.wait(tr[b, ks])
            mfma(vS + 4*b, v(vA + 8*b + 4*ks, 4), v(vXo + 4*ks, 4), v(vS + 4*b, 4) if ks else '0')
    a(f'v_cvt_pk_bf16_f32 {T0}, {v(vS)}, {v(vS+1)}')
    a(f'v_cvt_pk_bf16_f32 {T1}, {v(vS+2)}, {v(vS+3)}')
    a(f'v_cvt_pk_bf16_f32 {T2}, {v(vS+4)}, {v(vS+5)}')
    a(f'v_cvt_pk_bf16_f32 {T3}, {v(vS+6)}, {v(vS+7)}')
    setexec(mQST)
    a(f'v_cndmask_b32 {v(vPub)}, {T0}, {T2}, {mN1}')
    a(f'v_cndmask_b32 {v(vPub+2)}, {T1}, {T3}, {mN1}')
    a(f'global_store_dwordx4 {v(vQBs)}, {v(vPub,4)}, {sWS} sc1')
    setexec(-1)
    stamp('qpub')

    def sreads(s):
        base, off = (vSA, R[s]) if s < 2 else (vSA2, R[s] - R[2])
        l = []
        for ks in range(4):
            for kt in range(2):
                l.append(f'ds_read_b128 {ac(128 + ((s*4 + ks)*2 + kt)*4, 4)}, {v(base)} offset:{off + 16*ks + 4160*kt}')
        return l
    def pvreads(s):
        base, off = (vTR, R[s]) if s < 2 else (vTR2, R[s] - R[2])
        l = []
        for ks in range(4):
            for b in range(2):
                for u in range(2):
                    l.append(f'ds_read_b64_tr_b16 {ac(((s*2 + b)*4 + ks)*4 + 2*u, 2)}, {v(base)} offset:{off + 1040*(8*ks + 4*u) + 16*b}')
        return l

    a.wait(tS[0] if o['order'] == 'a' else tUK)
    ldq = f'global_load_dwordx4 {v(vE,4)}, {v(vQBl)}, {sWS} sc1'
    tQ = a(ldq)
    a('s_barrier')
    tS[1] = stage(1)
    a.wait(tUK, tS[0])
    for ks in range(4): tb = a(f'ds_read_b128 {v(vB + 4*ks, 4)}, {v(vSA2)} offset:{33280 + 16*ks}')
    for l in sreads(0): a(l)
    a.wait(tQ)
    a.label('Lq_chk')
    a(f'ds_write2_b32 {v(vQIw)}, {v(vE)}, {v(vE+2)} offset0:0 offset1:1')
    a(f'v_bitop3_b32 {T0}, {v(vE+1)}, {v(vE+3)}, {sT} bitop3:0x7e')
    a(f'v_cmp_ne_u32 vcc, 0, {T0}')
    a('s_cbranch_vccnz Lq_retry')
    a.label('Lq_ok'); retry('q', [ldq])
    a.wait_all(lg=True)
    a('s_barrier')
    stamp('qgot')

    tq = [a(f'ds_read_b128 {v(vA + 4*ks, 4)}, {v(vQIr)} offset:{16*ks}') for ks in range(4)]
    for ks in range(4):
        a.wait(tq[ks])
        mfma(vS, v(vA + 4*ks, 4), v(vB + 4*ks, 4), v(vS, 4) if ks else '0')
    pv0 = pvreads(0)
    for l in pv0[:8]: a(l)
    a(f'v_add_f32 {T0}, {v(vS)}, {v(vS+1)}')
    a(f'v_add_f32 {T1}, {v(vS+2)}, {v(vS+3)}')
    a(f'v_add_f32 {T0}, {T0}, {T1}')
    a(f'v_mov_b32 {T1}, {T0}')
    a(f'v_permlane16_swap_b32 {T0}, {T1}')
    a(f'v_add_f32 {T0}, {T0}, {T1}')
    a(f'v_mul_f32 {T1}, {T0}, {v(vScl)}')
    a(f'v_mul_f32_dpp {T2}, {T0}, {v(vScl)} quad_perm:[1,1,3,3]{DPP}')
    a(f'v_cvt_pk_bf16_f32 {v(vPub)}, {T1}, {T2}')
    setexec(0x5555)
    a(f'global_store_dwordx2 {v(vQAs)}, {v(vPub,2)}, {sWS} sc1')
    setexec(-1)
    stamp('qapub')
    for l in pv0[8:]: a(l)
    tS[2] = stage(2)
    ldqa = [f'global_load_dwordx4 {v(vA + 4*y, 4)}, {v(vQAl)}, {sWS} offset:{1024*y} sc1' for y in range(4)]
    a.wait(tS[1])
    tQA = [a(l) for l in ldqa]
    a.wait_all(lg=True)
    a('s_barrier')
    tS[3] = stage(3)
    a(f's_mul_i32 {t2}, {sW}, 2112'); a(f's_add_u32 m0, {t2}, {W1}')
    setexec(mFFN)
    dma(vW1a, sW1p, ntw)
    tW1 = dma(vW1a, sW1p, ntw, 1056, f'v_add_u32 {v(vW1a)}, 22016, {v(vW1a)}')
    setexec(-1)
    for l in sreads(1): a(l)
    for l in pvreads(1): a(l)
    a(f's_cmp_lg_u32 {sW}, 3'); a('s_cbranch_scc1 Lg1'); a.begin_cond()
    a(f'v_dot2_f32_bf16 {T0}, {v(vO)}, {v(vO+4)}, 0')
    for r in range(1, 4): a(f'v_dot2_f32_bf16 {T0}, {v(vO+r)}, {v(vO+4+r)}, {T0}')
    def wave_reduce(op, x, t):
        for m in ('quad_perm:[1,0,3,2]', 'quad_perm:[2,3,0,1]', 'row_half_mirror', 'row_mirror'):
            a(f'{op}_dpp {x}, {x}, {x} {m}{DPP}')
        for sw in (16, 32):
            a(f'v_mov_b32 {t}, {x}'); a(f'v_permlane{sw}_swap_b32 {t}, {x}'); a(f'{op} {x}, {x}, {t}')
    wave_reduce('v_add_f32', T0, T1)
    a(f'v_mul_f32 {T0}, {f2u(-LOG2E):#x}, {T0}')
    a(f'v_exp_f32 {T0}, {T0}')
    a(f'v_add_f32 {T0}, 1.0, {T0}')
    a(f'v_rcp_f32 {T0}, {T0}')
    a(f'v_mov_b32 {T1}, {GG}')
    a(f'v_sub_f32 {v(vOmg)}, 1.0, {T0}')
    a(f'v_mul_f32 {v(vOmg)}, 0x3e000000, {v(vOmg)}')
    a(f'ds_write_b32 {T1}, {T0}')
    a.end_cond('Lg1')
    a.wait(tS[2])
    for l in sreads(2): a(l)

    a.wait(tQA[0])
    a.label('Lqa_chk')
    for y in range(4):
        a.wait(tQA[y])
        a(f'ds_write2_b32 {v(vQ2w + y)}, {v(vA + 4*y)}, {v(vA + 4*y + 2)} offset0:0 offset1:1')
        a(f'v_bitop3_b32 {v(vT[y])}, {v(vA + 4*y + 1)}, {v(vA + 4*y + 3)}, {sT} bitop3:0x7e')
    a(f'v_or3_b32 {T0}, {T0}, {T1}, {T2}')
    a(f'v_or_b32 {T0}, {T0}, {T3}')
    a(f'v_cmp_ne_u32 vcc, 0, {T0}')
    a('s_cbranch_vccnz Lqa_retry')
    a.label('Lqa_ok'); retry('qa', ldqa)
    a.wait_all(lg=True)
    a('s_barrier')
    stamp('qagot')

    qrd = [f'ds_read_b128 {v(vQ + 4*k, 4)}, {v(vQ2r)} offset:{256*(k>>2) + 16*(k&3)}' for k in range(16)]
    tq = [a(l) for l in qrd[:8]]
    late = []
    late.append((f's_mul_i32 {t2}, {sW}, 4160', f's_add_u32 m0, {t2}, {R[0]}', 's_nop 0', f'global_load_lds_dwordx4 {v(vUV)}, {sWUV}{ntw}'))
    for p in range(1, 4): late.append((f's_add_u32 m0, m0, 1040', f'v_add_u32 {v(vUV)}, 8192, {v(vUV)}', f'global_load_lds_dwordx4 {v(vUV)}, {sWUV}{ntw}'))
    late.append((f's_mul_i32 {t2}, {sW}, 4224', f's_add_u32 m0, {t2}, {WO}', 's_nop 0', f'global_load_lds_dwordx4 {v(vWOa)}, {sWOp}{ntw}'))
    for p in range(1, 4): late.append((f's_add_u32 m0, m0, 1056', f'v_add_u32 {v(vWOa)}, 8192, {v(vWOa)}', f'global_load_lds_dwordx4 {v(vWOa)}, {sWOp}{ntw}'))
    pv2 = pvreads(2)
    for k in range(12):
        if k < 8: tq.append(a(qrd[8 + k]))
        a.wait(tq[k])
        for kt in range(2):
            mfma(vS + 4*kt, ac(128 + (k*2 + kt)*4, 4), v(vQ + 4*k, 4), v(vS + 4*kt, 4) if k else '0')
            if k >= 8: a(pv2.pop(0)); a(pv2.pop(0))
    for grp in late:
        for l in grp: tLate = a(l)
    a(f's_mul_i32 {t2}, {sW}, 2112'); a(f's_add_u32 m0, {t2}, {W2}')
    setexec(mFFN)
    dma(vW2a, sW2p, ntw)
    dma(vW2a, sW2p, ntw, 1056, f'v_add_u32 {v(vW2a)}, 8192, {v(vW2a)}')
    setexec(-1)
    a.wait(tS[3])
    stamp('s3')
    ts = [a(l) for l in sreads(3)]
    for k in range(12, 16):
        for kt in range(2):
            a.wait(ts[(k-12)*2 + kt])
            mfma(vS + 4*kt, ac(128 + (k*2 + kt)*4, 4), v(vQ + 4*k, 4), v(vS + 4*kt, 4))
    for r in range(4): a(f'v_cndmask_b32 {v(vE + r)}, {v(vS + r)}, {v(vS + 4 + r)}, {mKT}')
    a(f'v_max3_f32 {T0}, {v(vE)}, {v(vE+1)}, {v(vE+2)}')
    a(f'v_max_f32 {T0}, {T0}, {v(vE+3)}')
    a(f'v_max_f32_dpp {T0}, {T0}, {T0} row_ror:8{DPP}')
    for sw in (16, 32):
        a(f'v_mov_b32 {T1}, {T0}'); a(f'v_permlane{sw}_swap_b32 {T1}, {T0}'); a(f'v_max_f32 {T0}, {T0}, {T1}')
    setexec(0xff)
    a(f'ds_write_b32 {v(vMXw)}, {T0}')
    setexec(-1)
    a.wait_all(lg=True)
    a('s_barrier')
    t = a(f'ds_read_b128 {v(vS,4)}, {v(vMXr)}')
    a.wait(t)
    a(f'v_max3_f32 {T0}, {v(vS)}, {v(vS+1)}, {v(vS+2)}')
    a(f'v_max_f32 {T0}, {T0}, {v(vS+3)}')
    for r in range(4): a(f'v_sub_f32 {v(vE + r)}, {v(vE + r)}, {T0}')
    for r in range(4): a(f'v_exp_f32 {v(vE + r)}, {v(vE + r)}')
    a(f'v_cvt_pk_bf16_f32 {v(vS+4)}, {v(vE)}, {v(vE+1)}')
    a(f'v_cvt_pk_bf16_f32 {v(vS+5)}, {v(vE+2)}, {v(vE+3)}')
    a(f'ds_write_b64 {v(vPw)}, {v(vS+4,2)}')
    a(f'v_add_f32 {T0}, {v(vE)}, {v(vE+1)}')
    a(f'v_add_f32 {T1}, {v(vE+2)}, {v(vE+3)}')
    a(f'v_add_f32 {T0}, {T0}, {T1}')
    t = a(f'ds_write_b32 {v(vLSw)}, {T0}')
    a.wait(t, tW1)
    a('s_barrier')
    stamp('pbar')

    tp = [a(f'ds_read_b128 {v(vA + 4*ks, 4)}, {v(vPr)} offset:{512*ks}') for ks in range(4)]
    tl = a(f'ds_read_b128 {v(vS,4)}, {v(vLSr)}')
    tm = a(f'ds_read_b128 {v(vS+4,4)}, {v(vMXr2)}')
    pv3 = pvreads(3)
    side = [
        ('w', tm), f'v_add_f32 {T0}, {v(vS)}, {v(vS+1)}', f'v_add_f32 {T1}, {v(vS+2)}, {v(vS+3)}',
        f'v_add_f32 {v(vE+1)}, {T0}, {T1}', f'v_max3_f32 {v(vE)}, {v(vS+4)}, {v(vS+5)}, {v(vS+6)}',
        f'v_max_f32 {v(vE)}, {v(vE)}, {v(vS+7)}',
        f'v_add_f32_dpp {v(vE+1)}, {v(vE+1)}, {v(vE+1)} quad_perm:[1,0,3,2]{DPP}', None,
        f'v_add_f32_dpp {v(vE+1)}, {v(vE+1)}, {v(vE+1)} quad_perm:[2,3,0,1]{DPP}', None,
        f'v_add_f32_dpp {v(vE+1)}, {v(vE+1)}, {v(vE+1)} row_half_mirror{DPP}', None,
        ('ml',)]
    t3rd = {}
    n = 0
    for s in range(4):
        for ks in range(4):
            for b in range(2):
                a.wait(tp[ks])
                if s == 3: a.wait(t3rd[ks, b])
                d = vO + (s*2 + b)*4
                mfma(d, v(vA + 4*ks, 4), ac(((s*2 + b)*4 + ks)*4, 4), v(d, 4) if ks else '0')
                if s == 0:
                    a(pv3.pop(0)); t3rd[ks, b] = a(pv3.pop(0))
                elif side:
                    x = side.pop(0)
                    if isinstance(x, tuple) and x[0] == 'w':
                        a.wait(x[1]); x = side.pop(0)
                    if isinstance(x, tuple):
                        setexec(mML)
                        a(f'global_store_dwordx2 {v(vMLs)}, {v(vE,2)}, {sWS} sc1')
                        setexec(-1)
                    elif x: a(x)
                if s == 3 and ks == 0 and b == 0:
                    tf1 = [a(f'ds_read_b64_tr_b16 {v(vWF1 + 2*k, 2)}, {v(vTO2)} offset:{4224*(k>>1) + 512*(k&1)}') for k in range(4)]
                if s == 3 and ks >= 1:
                    sp = ks - 1
                    a(f'v_cvt_pk_bf16_f32 {v(vB + 4*b + sp)}, {v(vO + sp*8 + b)}, {v(vO + sp*8 + 4 + b)}')
    a.wait(tf1[3])
    mfma(vS, v(vXo, 4), v(vWF1, 4), '0')
    mfma(vS, v(vXo + 4, 4), v(vWF1 + 4, 4), v(vS, 4))
    a(f'v_cvt_pk_bf16_f32 {v(vB + 3)}, {v(vO + 24)}, {v(vO + 28)}')
    a(f'v_cvt_pk_bf16_f32 {v(vB + 7)}, {v(vO + 25)}, {v(vO + 29)}')
    a(f'global_store_dwordx4 {v(vOs0)}, {v(vB,4)}, {sWS} sc1')
    a(f'global_store_dwordx4 {v(vOs1)}, {v(vB+4,4)}, {sWS} sc1')
    stamp('opub')
    a(f'v_mov_b32 {v(vPub)}, {v(vS)}')
    setexec(0xffff)
    a(f'global_store_dwordx2 {v(vFs)}, {v(vPub,2)}, {sWS} sc1')
    setexec(-1)

    a.wait_all(vm=True)
    stamp('drain')
    vML = vE; vMr = vE + 2; vOg = vO
    ldml = [f'global_load_dwordx2 {v(vML,2)}, {v(vMLl)}, {sWS} sc1',
            f'global_load_dword {v(vMr)}, {v(vMLr)}, {sWS} sc1',
            f'global_load_dword {v(vMr+1)}, {v(vMLr)}, {sWS} offset:64 sc1']
    ldo = [f'global_load_dwordx4 {v(vOg + 4*u, 4)}, {v(vOl)}, {sWS} offset:{1024*u} sc1' for u in range(2)]
    for l in ldml: tML = a(l)
    for l in ldo: tO = a(l)
    ldf = [f'global_load_dwordx4 {v(vFg + 4*y, 4)}, {v(vFl)}, {sWS} offset:{1024*y} sc1' for y in range(4)]
    a(f's_cmp_eq_u32 {sW}, 3'); a(f's_cselect_b64 exec, {mFFN}, 1')
    for l in ldf: tF = a(l)
    setexec(-1)
    a('s_barrier')
    for b in range(2):
        for k in range(4):
            a(f'ds_read_b64_tr_b16 {v(vWD + 8*b + 2*k, 2)}, {v(vTR)} offset:{R[0] + 1040*4*k + 16*b}')
    a(f'v_mov_b32 {T1}, {GG}')
    tg = a(f'ds_read_b32 {v(vGate)}, {T1}')
    for k in range(8):
        a(f'ds_read_b64_tr_b16 {v(vWE + 2*k, 2)}, {v(vTO)} offset:{WO + 4224*(k>>1) + 512*(k&1)}')
    for k in range(4):
        a(f'ds_read_b64_tr_b16 {v(vWF2 + 2*k, 2)}, {v(vTO2)} offset:{8448 + 4224*(k>>1) + 512*(k&1)}')
    a.wait(tML)
    a.label('Lml_chk')
    a(f'v_max3_u32 {T0}, {v(vML)}, {v(vML+1)}, {v(vMr)}')
    a(f'v_max_u32 {T0}, {T0}, {v(vMr+1)}')
    a(f'v_cmp_eq_u32 vcc, -1, {T0}')
    a(f'v_mov_b32 {T4}, {v(vML)}')
    a('s_cbranch_vccnz Lml_retry')
    a.label('Lml_ok'); retry('ml', ldml)
    wave_reduce('v_max_f32', T4, T1)
    for u in range(2): a(f'v_sub_f32 {v(vMr+u)}, {v(vMr+u)}, {T4}')
    for u in range(2): a(f'v_exp_f32 {v(vMr+u)}, {v(vMr+u)}')
    a(f'v_sub_f32 {T5}, {v(vML)}, {T4}')
    for u in range(2): a(f'v_cvt_pk_bf16_f32 {v(vMr+u)}, {v(vMr+u)}, {v(vMr+u)}')
    a(f'v_exp_f32 {T5}, {T5}')
    for u in range(2):
        for d in range(4): a(f'v_and_b32 {v(vA + 4*u + d)}, {v(vMr+u)}, {v(vMask+d)}')
    a(f'v_cvt_pk_bf16_f32 {T5}, {v(vZero)}, {T5}')
    a.wait(tO)
    a.label('Lo_chk')
    mfma(vS, v(vA, 4), v(vOg, 4), '0')
    mfma(vS, v(vA + 4, 4), v(vOg + 4, 4), v(vS, 4))
    a(f'v_max3_u32 {T0}, {v(vOg)}, {v(vOg+1)}, {v(vOg+2)}')
    a(f'v_max3_u32 {T1}, {v(vOg+3)}, {v(vOg+4)}, {v(vOg+5)}')
    a(f'v_max3_u32 {T0}, {T0}, {v(vOg+6)}, {v(vOg+7)}')
    a(f'v_max_u32 {T0}, {T0}, {T1}')
    a(f'v_cmp_eq_u32 vcc, -1, {T0}')
    a('s_cbranch_vccnz Lo_retry')
    a.label('Lo_ok'); retry('o', ldo)
    a(f'v_mul_f32 {T6}, {T5}, {v(vML+1)}')
    setexec(mCX)
    a(f'v_cvt_pk_bf16_f32 {v(vS+4)}, {v(vS)}, {v(vS+1)}')
    a(f'v_cvt_pk_bf16_f32 {v(vS+5)}, {v(vS+2)}, {v(vS+3)}')
    a(f'ds_write_b64 {v(vCXw)}, {v(vS+4,2)}')
    setexec(-1)
    for m in ('quad_perm:[1,0,3,2]', 'quad_perm:[2,3,0,1]', 'row_half_mirror', 'row_mirror'):
        a(f'v_add_f32_dpp {T6}, {T6}, {T6} {m}{DPP}')
    a.wait_all(lg=True)
    a('s_barrier')
    stamp('ogot')

    tc = [a(f'ds_read_b128 {v(vA + 4*ks, 4)}, {v(vCXr)} offset:{64*ks}') for ks in range(2)]
    for sw in (16, 32):
        a(f'v_mov_b32 {T1}, {T6}'); a(f'v_permlane{sw}_swap_b32 {T1}, {T6}'); a(f'v_add_f32 {T6}, {T6}, {T1}')
    a(f'v_rcp_f32 {T6}, {T6}')
    for ks in range(2):
        a.wait(tc[ks])
        for b in range(2):
            mfma(vS + 4*b, v(vA + 4*ks, 4), v(vWD + 8*b + 4*ks, 4), v(vS + 4*b, 4) if ks else '0')
    a(f'v_mul_f32 {T6}, {T6}, {v(vGate)}')
    a(f'v_add_f32 {T0}, {v(vS)}, {v(vS+1)}')
    a(f'v_add_f32 {T1}, {v(vS+2)}, {v(vS+3)}')
    a(f'v_add_f32 {T2}, {v(vS+4)}, {v(vS+5)}')
    a(f'v_add_f32 {T3}, {v(vS+6)}, {v(vS+7)}')
    a(f'v_add_f32 {T0}, {T0}, {T1}')
    a(f'v_add_f32 {T2}, {T2}, {T3}')
    a(f'v_permlane16_swap_b32 {T0}, {T2}')
    a(f'v_add_f32 {T0}, {T0}, {T2}')
    a(f'v_mul_f32 {T1}, {T0}, {T6}')
    a(f'v_mul_f32_dpp {T2}, {T0}, {T6} quad_perm:[1,1,3,3]{DPP}')
    a(f'v_cvt_pk_bf16_f32 {T0}, {T1}, {T2}')
    setexec(0x55555555)
    tY = a(f'global_store_dword {v(vYs)}, {T0}, {sWS} sc1')
    setexec(-1)
    stamp('ypub')

    for r in range(4): a(f'v_mov_b32 {v(vE + r)}, 0')
    a(f's_cmp_ge_u32 {sFG}, 22'); a('s_cbranch_scc1 Lnf'); a.begin_cond()
    a(f's_cmp_lg_u32 {sW}, 3'); a('s_cbranch_scc1 Lf1'); a.begin_cond()
    a.wait(tF)
    a.label('Lf_chk')
    for y in range(4): a(f'v_bitop3_b32 {v(vT[y])}, {v(vFg + 4*y + 1)}, {v(vFg + 4*y + 3)}, {sT} bitop3:0x7e')
    a(f'v_or3_b32 {T0}, {T0}, {T1}, {T2}')
    a(f'v_or_b32 {T0}, {T0}, {T3}')
    a(f'v_cmp_ne_u32 vcc, 0, {T0}')
    a('s_cbranch_vccnz Lf_retry')
    a.label('Lf_ok'); retry('f', ldf)
    for k in range(2):
        a(f'v_add_f32 {v(vT[k])}, {v(vFg + 2*k)}, {v(vFg + 4 + 2*k)}')
        a(f'v_add_f32 {v(vT[2+k])}, {v(vFg + 8 + 2*k)}, {v(vFg + 12 + 2*k)}')
    a(f'v_add_f32 {T0}, {T0}, {T2}')
    a(f'v_add_f32 {T1}, {T1}, {T3}')
    a(f'v_permlane32_swap_b32 {T0}, {T1}')
    a(f'v_add_f32 {T0}, {T0}, {T1}')
    a(f'v_mul_f32 {T1}, {f2u(-LOG2E):#x}, {T0}')
    a(f'v_exp_f32 {T1}, {T1}')
    a(f'v_add_f32 {T1}, 1.0, {T1}')
    a(f'v_rcp_f32 {T1}, {T1}')
    a(f'v_mul_f32 {T0}, {T0}, {v(vOmg)}')
    a(f'v_mul_f32 {T0}, {T0}, {T1}')
    a(f'v_cndmask_b32 {T0}, {T0}, {v(vZero)}, {mFZ}')
    a(f'v_cvt_pk_bf16_f32 {T0}, {T0}, {T0}')
    a(f'v_lshrrev_b32 {T1}, 5, {v(vL)}')
    a(f'v_lshl_add_u32 {T1}, {T1}, 1, {v(vHw)}')
    a(f'ds_write_b16 {T1}, {T0}')
    a.wait_all(lg=True)
    a.end_cond('Lf1')
    a('s_barrier')
    th = [a(f'ds_read_b128 {v(vB + 4*ks, 4)}, {v(vHr)} offset:{64*ks}') for ks in range(2)]
    for ks in range(2):
        a.wait(th[ks])
        mfma(vE, v(vB + 4*ks, 4), v(vWF2 + 4*ks, 4), v(vE, 4) if ks else '0')
    a.end_cond('Lnf')

    a.wait_all(vm=True)
    ldy = [f'global_load_dwordx4 {v(vA + 4*ks, 4)}, {v(vYl)}, {sWS} offset:{2048*ks - 4096} sc1' for ks in range(4)]
    ty = [a(l) for l in ldy]
    a.wait(ty[0])
    a.label('Ly_chk')
    for ks in range(4):
        a.wait(ty[ks])
        mfma(vS, v(vA + 4*ks, 4), v(vWE + 4*ks, 4), v(vS, 4) if ks else v(vE, 4))
        a(f'v_max3_u32 {v(vT[ks])}, {v(vA + 4*ks)}, {v(vA + 4*ks + 1)}, {v(vA + 4*ks + 2)}')
    a(f'v_max3_u32 {T0}, {T0}, {v(vA+3)}, {v(vA+7)}')
    a(f'v_max3_u32 {T1}, {T1}, {v(vA+11)}, {v(vA+15)}')
    a(f'v_max3_u32 {T0}, {T0}, {T1}, {T2}')
    a(f'v_max_u32 {T0}, {T0}, {T3}')
    a(f'v_cmp_eq_u32 vcc, -1, {T0}')
    a('s_cbranch_vccnz Ly_retry')
    a.label('Ly_ok'); retry('y', ldy)
    a(f'v_add_f32 {T0}, {v(vS)}, {v(vS+1)}')
    a(f'v_add_f32 {T1}, {v(vS+2)}, {v(vS+3)}')
    a(f'v_add_f32 {T0}, {T0}, {T1}')
    a(f'v_mov_b32 {T1}, {T0}')
    a(f'v_permlane16_swap_b32 {T0}, {T1}')
    a(f'v_add_f32 {T0}, {T0}, {T1}')
    setexec(0xffff)
    a(f'global_store_dword {v(vRs)}, {T0}, {sWS} sc1')
    setexec(-1)
    stamp('rpub')

    a(f's_lshl2_add_u32 {t3}, {sJ}, {sW}')
    a(f's_cmp_lg_u32 {t3}, {sH}'); a('s_cbranch_scc1 Lfin'); a.begin_cond()
    if o['rpoll'] == 'atomic':
        ldr = [f'global_atomic_or_x2 {v(vB + 2*y, 2)}, {v(vRl)}, {v(vZero,2)}, {sWS} offset:{2048*y - 4096} sc0 sc1' for y in range(4)]
    else:
        a.wait_all(vm=True)
        ldr = [f'global_load_dwordx2 {v(vB + 2*y, 2)}, {v(vRl)}, {sWS} offset:{2048*y - 4096} sc1' for y in range(4)]
    for l in ldr: a(l)
    a.wait_all(vm=True)
    a.label('Lr_chk')
    a(f'v_max3_u32 {T2}, {v(vB)}, {v(vB+1)}, {v(vB+2)}')
    a(f'v_max3_u32 {T3}, {v(vB+3)}, {v(vB+4)}, {v(vB+5)}')
    a(f'v_max3_u32 {T2}, {T2}, {v(vB+6)}, {v(vB+7)}')
    a(f'v_max_u32 {T2}, {T2}, {T3}')
    a(f'v_cmp_eq_u32 vcc, -1, {T2}')
    a(f'v_add_f32 {T0}, {v(vB)}, {v(vB+2)}')
    a('s_cbranch_vccnz Lr_retry')
    a.label('Lr_ok'); retry('r', ldr)
    a(f'v_add_f32 {T1}, {v(vB+1)}, {v(vB+3)}')
    a(f'v_add_f32 {T2}, {v(vB+4)}, {v(vB+6)}')
    a(f'v_add_f32 {T3}, {v(vB+5)}, {v(vB+7)}')
    a(f'v_add_f32 {T0}, {T0}, {T2}')
    a(f'v_add_f32 {T1}, {T1}, {T3}')
    a(f'v_permlane32_swap_b32 {T0}, {T1}')
    a(f'v_add_f32 {T0}, {T0}, {T1}')
    a(f'v_add_f32_dpp {T0}, {T0}, {T0} row_ror:8{DPP}')
    a(f'v_mov_b32 {T1}, {T0}')
    a(f'v_permlane16_swap_b32 {T0}, {T1}')
    a(f'v_add_f32 {T0}, {T0}, {T1}')
    a(f'v_cvt_pk_bf16_f32 {T0}, {T0}, {T0}')
    a('s_mov_b32 exec_lo, 0xff'); a('s_mov_b32 exec_hi, 0xff')
    a(f'global_store_short {v(vOut)}, {T0}, {sOUT}')
    a(f's_cmp_lg_u32 {t3}, 0'); a('s_cbranch_scc1 Lfin')
    setexec(1)
    a(f'global_store_dword {v(vZero)}, {v(vPub+1)}, {sWS} sc1')
    a.end_cond('Lfin')
    if o['probe']:
        stamp('end')
        a('s_waitcnt lgkmcnt(0)')
        a.label('Lprobe')
        a('s_memrealtime s[72:73]'); a('s_waitcnt lgkmcnt(0)'); a('s_sub_u32 s72, s72, s70'); a('s_cmp_lt_u32 s72, 3000'); a('s_cbranch_scc1 Lprobe')
    if o['stamps']:
        stamp('end')
        setexec(1)
        a('s_waitcnt lgkmcnt(0)')
        a(f's_lshl2_add_u32 {t2}, s2, {sW}'); a(f's_lshl_b32 {t2}, {t2}, 7'); a(f's_add_u32 {t2}, {t2}, {STAMP}')
        a(f'v_mov_b32 {T0}, {t2}')
        for k in range(nst[0]):
            a(f'v_mov_b32 {T1}, s{STAMP0 + 2*k}')
            a(f'global_store_dword {T0}, {T1}, {sWS} offset:{4*k}')
        a(f'v_mov_b32 {T1}, {sTry}')
        a(f'global_store_dword {T0}, {T1}, {sWS} offset:124')
    a.label('Lend')
    a('s_endpgm')
    a.tail.append('Lcode_end:')
    hdr = ''.join(l for l in open(f'cdna_kernels/{NAME}.s.ref').readlines()[:16])
    extra = f'; stamps={",".join(names)}\n' if o['stamps'] else ''
    return f"""{hdr}{extra}; @launch grid=(256,1,1) block=(256,1,1) lds={LDS}
.amdgcn_target "amdgcn-amd-amdhsa--gfx950"
.text
.globl {NAME}_kernel
.p2align 8
.type {NAME}_kernel,@function
{NAME}_kernel:
{a.text()}
.section .rodata,"a"
.p2align 6
.amdhsa_kernel {NAME}_kernel
  .amdhsa_next_free_vgpr 512
  .amdhsa_next_free_sgpr 102
  .amdhsa_accum_offset 256
  .amdhsa_group_segment_fixed_size 0
  .amdhsa_kernarg_size 104
  .amdhsa_user_sgpr_count 2
  .amdhsa_user_sgpr_kernarg_segment_ptr 1
  .amdhsa_system_sgpr_workgroup_id_x 1
.end_amdhsa_kernel
""", nv[0], a.pads

if __name__ == '__main__':
    kw = {}
    for x in sys.argv[2:]:
        k, val = x.split('=')
        kw[k] = int(val) if val.lstrip('-').isdigit() else val
    txt, nvg, pads = gen(**kw)
    open(sys.argv[1], 'w').write(txt)
    print('vgprs', nvg, 'pads', pads)
```

```python
import sys, struct, math
from asmlib import Asm
NAME = 'gated_mix__compressed_kv_cla__dense_activation_silu__decode'
DEF = dict(rot=0, st='', ntw=1, ntc=0, maxtry=20000, probe='', clk=0, map='spread', k0=24, kf=12, bar0=1,
           s0='pre', s1='gather', flag='mid', nflag=12, loc0=1, loc3=1, nloc=12, late='split', pv3='gap', ogate='ack')
ALLST = 'start,karg,issued,wq,qpub,qgot,qapub,qaiss,qagot,sbar,pbar,opub,oiss,ogot,ypub,rpub,end'
def f2u(x): return struct.unpack('<I', struct.pack('<f', x))[0]
LOG2E = 1.4426950408889634

FLG, QA, QB, FB, PB, OB = 0x1000, 0x10000, 0x40000, 0x20000, 0x80000, 0x100000
PH = 10240; PR = 4096; PYG = 6144; PYL = 8192
STAMP = 128 << 20
WP = 8448
R = [0, 4*WP, 8*WP, 12*WP]
W1 = 16*WP; W2 = 17*WP; PI = QI = 18*WP
CX = PI + 2560; HH = CX + 1280; GG = HH + 128
LDS = GG + 64
SX = R[1]; Q2 = R[1] + 4608

def gen(**kw):
    o = dict(DEF); o.update(kw)
    a = Asm()
    ntw = ' nt' if o['ntw'] else ''
    ntc = ' nt' if o['ntc'] else ''
    sX, sCKV, sWQ, sWUK, sWUV, sWOp, sW1p, sW2p, sGW, sOUT, sWS = 's[4:5]', 's[6:7]', 's[8:9]', 's[10:11]', 's[12:13]', 's[14:15]', 's[18:19]', 's[20:21]', 's[22:23]', 's[24:25]', 's[28:29]'
    sW, sT, sH, sJ, sXCD, sI, sHG, sKB, sLoc, sFG, sFC, sM8 = 's30', 's31', 's32', 's33', 's34', 's35', 's36', 's37', 's38', 's39', 's40', 's41'
    sCK = ['s[42:43]', 's[44:45]', 's[46:47]', 's[48:49]']
    mN1, mQST, mCX, mFFN, mFZ = 's[50:51]', 's[52:53]', 's[56:57]', 's[60:61]', 's[62:63]'
    u1, u2, u3, sPH = 's54', 's55', 's58', 's59'
    t2, t3 = 's64', 's65'
    sTry, sCnt = 's66', 's3'
    STAMP0 = 68
    want = (ALLST if o['st'] == 'all' else o['st']).split(',') if o['st'] else []
    names = []
    def stamp(name):
        if name in want:
            r = STAMP0 + 2 * len(names); assert r <= 100
            a(f's_mem{"" if o["clk"] else "real"}time s[{r}:{r+1}]'); names.append(name)
        if o['probe'] == name: a('s_memrealtime s[70:71]')
    nv = [1]
    def V(n=1, al=1):
        r = (nv[0] + al - 1) // al * al; nv[0] = r + n; assert nv[0] <= 256, nv[0]; return r
    def v(r, n=1): return f'v{r}' if n == 1 else f'v[{r}:{r+n-1}]'
    def ac(r, n=1): return f'a{r}' if n == 1 else f'a[{r}:{r+n-1}]'
    vL, vG, vN, vSW, vR2, vQ2, vN7, vNH, vIdx = [v(V()) for _ in range(9)]
    vT = [V() for _ in range(7)]
    T0, T1, T2, T3, T4, T5, T6 = [v(x) for x in vT]
    F0, F1, F2, F3, F4, F5 = [v(V()) for _ in range(6)]
    vW = V(4); vCK = V(8); vPV = V(4); vQ2w = V(2); vMask = V(4)
    (vX, vP, vTR, vTR3, vUKr, vSB, vTO, vTO2, vQBs, vQBl, vQIw, vQIr, vQAs, vQAl, vQ2r, vFLs, vFLl, vSXw, vSXr, vPw, vPr,
     vMLs, vOs0, vOs1, vOl, vMLl, vMLr, vCXw, vCXr, vUV, vWOa, vW1a, vW2a, vFs, vFl, vHw, vHr, vYs, vYl, vRs, vRl, vOut,
     vGate, vOmg, vScl, vJunk, vYv) = [v(V()) for _ in range(47)]
    vZero = V(2, 2); vPub = V(2, 2); vFlg = V(2, 2)
    vNeg = V(4, 4); vXo = V(8, 4); vPq = V(4, 4)
    vSa = V(32, 4); vO = V(32, 4); vS = V(8, 4); vA = V(16, 4); vB = V(16, 4); vE = V(4, 4); vFg = V(16, 4)
    aWD, aWE, aWF1, aWF2 = 128, 144, 160, 168
    MF = 'v_mfma_f32_16x16x32_bf16'
    DPP = ' row_mask:0xf bank_mask:0xf'
    def mfma(d, x, y, c): a(f'{MF} {v(d,4)}, {x}, {y}, {c}')
    def smf(d, x, y): a(f'v_smfmac_f32_16x16x64_bf16 {v(d,4)}, {v(x,4)}, {ac(y,8)}, {vIdx}')
    def setexec(m):
        if isinstance(m, str): a(f's_mov_b64 exec, {m}')
        else: a(f's_mov_b64 exec, {m:#x}' if m > 64 else f's_mov_b64 exec, {m}')
    nhop = [0]
    def retry(name, loads, local=None, limit=None):
        t = a.tail
        t += [f'L{name}_retry:', '  s_nop 7', f'  s_add_u32 {sTry}, {sTry}, 1']
        if want: t += [f'  s_add_u32 {sCnt}, {sCnt}, {1 << (4*nhop[0])}']
        nhop[0] += 1
        t += [f'  s_cmp_gt_u32 {sTry}, {o["maxtry"]}', f'  s_cbranch_scc1 L{name}_ok', '  s_waitcnt lgkmcnt(0)']
        if limit:
            t += [f'  s_add_u32 {sLoc}, {sLoc}, 1', f'  s_cmp_gt_u32 {sLoc}, {limit}', f'  s_cbranch_scc1 L{name}_ok']
        if local:
            t += [f'  s_add_u32 {sLoc}, {sLoc}, 1', f'  s_cmp_ge_u32 {sLoc}, {local[0]}', f'  s_cbranch_scc1 L{name}_far']
        t += ['  ' + l for l in loads]
        t += ['  s_waitcnt vmcnt(0)', '  s_nop 1', f'  s_branch L{name}_chk']
        if local:
            t += [f'L{name}_far:', f'  s_cmp_lg_u32 {sLoc}, {local[0]}', f'  s_cbranch_scc1 L{name}_far2']
            t += ['  ' + l for l in local[1]]
            t += [f'L{name}_far2:']
            t += ['  ' + l for l in local[2]]
            t += ['  s_waitcnt vmcnt(0)', '  s_nop 1', f'  s_branch L{name}_chk']

    fq = []
    def q(*lines): fq.append(lines)
    def mark(n): fq.append(n)
    done = set()
    def fill(n):
        while fq and (n > 0 or isinstance(fq[0], str)):
            x = fq.pop(0)
            if isinstance(x, str): done.add(x); continue
            for l in x: a(l)
            n -= len(x)
    def need(n):
        while n not in done: fill(1)

    q(f'v_lshl_add_u32 {v(vCK)}, {vG}, 10, {vSW}')
    q(f's_lshl_b32 {u1}, {sW}, 8')
    q(f'v_add_u32 {v(vCK)}, {u1}, {v(vCK)}')
    if o['map'] == 'spread':
        q(f's_lshr_b32 {u1}, {sI}, 3'); q(f's_add_u32 {u1}, {u1}, {sJ}'); q(f's_and_b32 {sHG}, {u1}, 3')
        q(f's_lshl3_add_u32 {sKB}, {sXCD}, {sJ}')
    else:
        q(f's_and_b32 {sHG}, {sI}, 3'); q(f's_lshr_b32 {u1}, {sI}, 2'); q(f's_lshl3_add_u32 {sKB}, {sXCD}, {u1}')
    q(f'v_bfe_u32 {vR2}, v0, 2, 2')
    q(f'v_and_b32 {vQ2}, 3, v0')
    q(f'v_and_b32 {vN7}, 7, v0')
    q(f'v_bfe_u32 {vNH}, v0, 3, 1')
    q(f'v_mul_u32_u24 {F0}, 1040, {vG}')
    q(f'v_lshl_add_u32 {F0}, {vR2}, 8, {F0}')
    q(f'v_and_b32 {F1}, 2, v0')
    q(f'v_lshl_add_u32 {F0}, {F1}, 4, {F0}')
    q(f'v_and_b32 {F1}, 1, v0')
    q(f'v_lshl_add_u32 {F5}, {F1}, 3, {F0}')
    q(f'v_xor_b32 {F2}, {sW}, {vR2}')
    q(f'v_lshl_add_u32 {vTR}, {F2}, 6, {F5}')
    q(f'v_add_u32 {vTR3}, {R[3]}, {vTR}')
    q(f's_lshl_b32 {u1}, {sH}, 13'); q(f's_add_u32 {u1}, {u1}, {QB + 4096}')
    q(f'v_lshl_add_u32 {vQBl}, v0, 4, {u1}')
    q(f's_lshl2_add_u32 {u3}, {sJ}, {sW}'); q(f's_lshl_b32 {u2}, {u3}, 7'); q(f's_add_u32 {u1}, {u1}, {u2}')
    q(f'v_lshlrev_b32 {F0}, 5, {vG}')
    q(f'v_lshl_add_u32 {F0}, {vN}, 4, {F0}')
    q(f'v_add_u32 {vQBs}, {u1}, {F0}')
    q(f's_mul_i32 {sPH}, {sH}, {PH}'); q(f's_add_u32 {sPH}, {sPH}, {PB}')
    q(f's_mul_i32 {u2}, {u3}, 320'); q(f's_add_u32 {u2}, {u2}, {sPH}')
    q(f'v_lshl_add_u32 {vP}, {vL}, 4, {u2}')
    q(f's_lshl_b32 {u1}, {sH}, 16'); q(f's_lshl_b32 {u2}, {u3}, 11'); q(f's_add_u32 {u1}, {u1}, {u2}'); q(f's_add_u32 {u1}, {u1}, {OB}')
    q(f'v_lshl_add_u32 {vOl}, {vL}, 4, {u1}')
    q(f'v_mov_b64 {v(vNeg,2)}, -1'); q(f'v_mov_b64 {v(vNeg+2,2)}, -1')
    q(f'v_lshlrev_b32 {vHr}, 4, {vL}')
    for p in range(1, 8): q(f'v_add_u32 {v(vCK+p)}, {4096*p}, {v(vCK)}')
    mark('poison')
    q('s_mov_b32 s50, 0x00020002'); q('s_mov_b32 s51, s50')
    q('s_mov_b32 s52, 0x00030003'); q('s_mov_b32 s53, s52')
    mark('A')
    q(f'v_lshrrev_b32 {F0}, 5, v0')
    q(f'v_and_b32 {F2}, 3, {F0}')
    q(f'v_lshlrev_b32 {F3}, 8, {F0}')
    q(f'v_lshl_add_u32 {F3}, {F2}, 4, {F3}')
    q(f'v_and_b32 {F2}, 4, {F0}')
    q(f'v_lshl_add_u32 {F3}, {F2}, 5, {F3}')
    q(f'v_and_b32 {F2}, 28, v0')
    q(f'v_lshl_add_u32 {F3}, {F2}, 3, {F3}')
    q(f'v_lshl_add_u32 {F3}, {F1}, 4, {F3}')
    q(f'v_and_b32 {F2}, 2, v0')
    q(f'v_lshl_add_u32 {F3}, {F2}, 2, {F3}')
    q(f'v_add_u32 {vQIw}, {QI}, {F3}')
    q(f'v_and_b32 {F0}, 4, v0')
    q(f'v_lshlrev_b32 {F0}, 5, {F0}')
    q(f'v_lshl_add_u32 {F0}, {vQ2}, 4, {F0}')
    q(f'v_lshl_add_u32 {F0}, {vG}, 6, {F0}')
    q(f'v_lshl_add_u32 {F0}, {vN7}, 8, {F0}')
    q(f'v_add_u32 {vQIr}, {QI}, {F0}')
    q(f'v_mul_u32_u24 {F0}, 1040, {vR2}')
    q(f'v_lshl_add_u32 {F0}, {vQ2}, 8, {F0}')
    q(f'v_xor_b32 {F2}, {vG}, {vQ2}')
    q(f'v_lshl_add_u32 {F0}, {F2}, 6, {F0}')
    q(f's_add_u32 {u1}, {sM8}, {R[3]}')
    q(f'v_add_u32 {vUKr}, {u1}, {F0}')
    q(f's_lshr_b32 {u1}, {sH}, 3'); q(f's_lshr_b32 {u2}, {sJ}, 1'); q(f's_lshl2_add_u32 {u1}, {u1}, {u2}')
    q(f's_and_b32 {u2}, {sH}, 7'); q(f's_lshl3_add_u32 {u1}, {u1}, {u2}'); q(f's_and_b32 {u2}, {u3}, 7')
    q(f's_lshl3_add_u32 {u1}, {u1}, {u2}'); q(f's_lshl_b32 {u1}, {u1}, 6'); q(f's_add_u32 {u1}, {u1}, {QA}')
    q(f'v_lshl_add_u32 {vQAs}, {vN}, 2, {u1}')
    q(f'v_mov_b32 {vScl}, {f2u(LOG2E / math.sqrt(128.0)):#x}')
    q(f'v_bfe_u32 {F0}, v0, 1, 3')
    q(f'v_mul_u32_u24 {F0}, 1040, {F0}')
    q(f'v_lshl_add_u32 {F0}, {F1}, 9, {F0}')
    q(f'v_and_b32 {F4}, 1, {vG}')
    q(f'v_xor_b32 {F2}, {F4}, {F1}')
    q(f'v_lshl_add_u32 {F0}, {F2}, 7, {F0}')
    q(f'v_lshrrev_b32 {F3}, 5, {vL}')
    q(f'v_lshl_add_u32 {F0}, {F3}, 4, {F0}')
    q(f'v_add_u32 {vSB}, {sM8}, {F0}')
    q(f'v_add_u32 {F5}, {sM8}, {F5}')
    q(f'v_lshl_add_u32 {v(vPV)}, {vR2}, 6, {F5}')
    for c in range(1, 4):
        q(f'v_xor_b32 {F2}, {c}, {vR2}')
        q(f'v_lshl_add_u32 {v(vPV+c)}, {F2}, 6, {F5}')
    if o['flag'] != 'no':
        q(f's_lshl_b32 {u1}, {sXCD}, 9'); q(f's_add_u32 {u1}, {u1}, {FLG}')
        q(f'v_lshl_add_u32 {vFLl}, {vL}, 3, {u1}')
        q(f's_lshl2_add_u32 {u2}, {sI}, {sW}'); q(f's_lshl2_add_u32 {u1}, {u2}, {u1}')
        q(f'v_mov_b32 {vFLs}, {u1}')
    mark('B')
    q(f's_lshl2_add_u32 {u1}, {sHG}, {sW}'); q(f's_lshl_b32 {u1}, {u1}, 12'); q(f's_add_u32 {u1}, {u1}, {QA}')
    q(f'v_lshl_add_u32 {vQAl}, {vL}, 4, {u1}')
    q(f's_lshr_b32 {u1}, {sJ}, 1'); q(f's_and_b32 {u2}, {sW}, 1'); q(f's_lshl1_add_u32 {u1}, {u1}, {u2}')
    q(f's_and_b32 {u2}, {sJ}, 1'); q(f's_lshl2_add_u32 {u1}, {u1}, {u2}')
    q(f's_lshr_b32 {u2}, {sW}, 1'); q(f's_lshl2_add_u32 {u1}, {u1}, {u2}'); q(f's_lshl_b32 {u1}, {u1}, 15')
    q(f's_lshl_b32 {u2}, {sH}, 8'); q(f's_add_u32 {u1}, {u1}, {u2}')
    q(f'v_lshl_add_u32 {F0}, {F3}, 18, {vSW}')
    q(f'v_lshl_add_u32 {F0}, {F4}, 16, {F0}')
    q(f'v_add_u32 {vUV}, {u1}, {F0}')
    q(f'v_lshlrev_b32 {F5}, 4, {vN7}')
    q(f'v_lshlrev_b32 {F2}, 6, {F4}')
    q(f'v_xor_b32 {F2}, {F2}, {F5}')
    q(f'v_lshrrev_b32 {vMLr}, 3, {vL}')
    q(f'v_lshl_add_u32 {F0}, {vMLr}, 10, {F2}')
    q(f's_lshl2_add_u32 {u1}, {sH}, {sW}'); q(f's_lshl_b32 {u1}, {u1}, 15'); q(f's_lshl_b32 {u2}, {sJ}, 7'); q(f's_add_u32 {u1}, {u1}, {u2}')
    q(f'v_add_u32 {vWOa}, {u1}, {F0}')
    q(f's_lshl_b32 {sFC}, {sFG}, 6'); q(f's_min_u32 {sFC}, {sFC}, 1312')
    q(f's_lshl4_add_u32 {u1}, {sW}, {sFC}'); q(f's_lshl_b32 {u1}, {u1}, 10'); q(f's_add_u32 {u1}, {u1}, {u2}')
    q(f'v_add_u32 {vW2a}, {u1}, {F0}')
    q(f'v_mul_u32_u24 {F0}, 2752, {vMLr}')
    q(f'v_add_u32 {F0}, {F0}, {F2}')
    q(f's_mul_i32 {u1}, {u3}, {16*2752}'); q(f's_lshl1_add_u32 {u1}, {sFC}, {u1}')
    q(f'v_add_u32 {vW1a}, {u1}, {F0}')
    q(f's_cmp_lt_u32 {sFG}, 22', f's_cselect_b64 {mFFN}, -1, 1')
    q(f's_cmp_eq_u32 {sFG}, 21', 's_cselect_b32 s62, 0xffff, 0', 's_mov_b32 s63, s62')
    q(f'v_mul_u32_u24 {F0}, 160, {vN}')
    q(f'v_lshl_add_u32 {F0}, {vG}, 4, {F0}')
    q(f'v_add_u32 {vPr}, {PI}, {F0}')
    q(f's_add_u32 {u1}, {sM8}, {Q2}')
    q(f'v_add_u32 {vQ2r}, {u1}, {F0}')
    q(f'v_mul_u32_u24 {F0}, 320, {F3}')
    q(f'v_lshl_add_u32 {F0}, {vQ2}, 4, {F0}')
    q(f'v_and_or_b32 {F0}, v0, 4, {F0}')
    q(f'v_lshl_add_u32 {F0}, {vNH}, 6, {F0}')
    q(f'v_lshl_add_u32 {F0}, {F4}, 3, {F0}')
    q(f'v_add_u32 {v(vQ2w)}, {u1}, {F0}')
    q(f'v_add_u32 {v(vQ2w+1)}, 1280, {v(vQ2w)}')
    q(f'v_mul_u32_u24 {F0}, 0xaaaa, {F1}')
    q(f'v_add_u32 {vIdx}, 0x4444, {F0}')
    for r in range(0, 32, 2): q(f'v_mov_b64 {v(vSa+r,2)}, 0')
    q(f'v_lshlrev_b32 {F0}, 4, {vN}')
    q(f'v_lshl_add_u32 {F0}, {vG}, 10, {F0}')
    q(f's_add_u32 {u1}, {sM8}, {SX}')
    q(f'v_add_u32 {vSXw}, {u1}, {F0}')
    q(f's_lshl_b32 {u1}, {sW}, 10'); q(f's_add_u32 {u1}, {u1}, {SX}')
    q(f'v_lshl_add_u32 {vSXr}, {vL}, 4, {u1}')
    q(f'v_mul_u32_u24 {F0}, 160, {F1}')
    q(f'v_lshl_add_u32 {F0}, {vG}, 5, {F0}')
    q(f'v_and_or_b32 {F2}, v0, 6, {vNH}')
    q(f'v_lshl_add_u32 {F0}, {F2}, 2, {F0}')
    q(f's_mul_i32 {u1}, {sW}, 640'); q(f's_add_u32 {u1}, {u1}, {PI}')
    q(f'v_add_u32 {vPw}, {u1}, {F0}')
    for r in range(0, 32, 2): q(f'v_mov_b64 {v(vO+r,2)}, 0')
    q(f's_lshl2_add_u32 {u1}, {sHG}, {sW}'); q(f's_mul_i32 {u1}, {u1}, {2*PH}'); q(f's_lshl3_add_u32 {u1}, {sKB}, {u1}'); q(f's_add_u32 {u1}, {u1}, {PB}')
    q(f'v_mul_u32_u24 {F0}, {PH}, {F3}')
    q(f'v_lshl_add_u32 {F0}, {vN7}, 9, {F0}')
    q(f'v_add_u32 {vMLs}, {u1}, {F0}')
    q(f's_lshl_b32 {u1}, {sHG}, 19'); q(f's_lshl_b32 {u2}, {sW}, 14'); q(f's_add_u32 {u1}, {u1}, {u2}')
    q(f's_lshl_b32 {u2}, {sKB}, 7'); q(f's_add_u32 {u1}, {u1}, {u2}'); q(f's_add_u32 {u1}, {u1}, {OB}')
    q(f'v_lshl_add_u32 {F0}, {vG}, 17, {F5}')
    q(f'v_lshl_add_u32 {F0}, {vNH}, 13, {F0}')
    q(f'v_add_u32 {vOs0}, {u1}, {F0}')
    q(f'v_add_u32 {vOs1}, 65536, {vOs0}')
    q(f's_lshl_b32 {u1}, {sJ}, 9'); q(f's_add_u32 {u1}, {u1}, {sPH}')
    q(f'v_lshl_add_u32 {vMLl}, {vL}, 3, {u1}')
    q(f's_lshl_b32 {u2}, {sW}, 7'); q(f's_add_u32 {u1}, {u1}, {u2}')
    q(f'v_lshl_add_u32 {vMLr}, {vMLr}, 3, {u1}')
    q(f'v_mul_u32_u24 {F0}, 160, {vNH}')
    q(f'v_add_u32 {F0}, {F0}, {F5}')
    q(f'v_lshl_add_u32 {F0}, {F4}, 3, {F0}')
    q(f's_mul_i32 {u1}, {sW}, 320'); q(f's_add_u32 {u1}, {u1}, {CX}')
    q(f'v_add_u32 {vCXw}, {u1}, {F0}')
    q(f'v_mul_u32_u24 {F0}, 160, {vN7}')
    q(f'v_lshl_add_u32 {F0}, {vG}, 4, {F0}')
    q(f'v_add_u32 {vCXr}, {CX}, {F0}')
    q(f'v_mul_u32_u24 {F0}, 1056, {vG}')
    q(f'v_lshl_add_u32 {F0}, {vR2}, 7, {F0}')
    q(f'v_and_b32 {F2}, 2, {vR2}')
    q(f'v_xor_b32 {F2}, {sW}, {F2}')
    q(f'v_lshl_add_u32 {F0}, {F2}, 5, {F0}')
    q(f'v_lshl_add_u32 {vTO}, {vQ2}, 3, {F0}')
    q(f'v_add_u32 {vTO2}, {W1}, {vTO}')
    q(f's_lshl_b32 {u1}, {sFG}, 12'); q(f's_add_u32 {u1}, {u1}, {FB}')
    q(f'v_lshl_add_u32 {vFl}, {vL}, 4, {u1}')
    q(f's_lshl_b32 {u2}, {u3}, 7'); q(f's_add_u32 {u1}, {u1}, {u2}')
    q(f'v_lshl_add_u32 {vFs}, {vN}, 3, {u1}')
    q(f'v_and_b32 {F0}, 31, v0')
    q(f'v_lshl_add_u32 {F0}, {F0}, 1, {F3}')
    q(f'v_lshlrev_b32 {F0}, 1, {F0}')
    q(f'v_add_u32 {vHw}, {HH}, {F0}')
    q(f's_lshl_b32 {u1}, {u3}, 5')
    q(f'v_lshlrev_b32 {F0}, 1, {F3}')
    q(f'v_lshl_add_u32 {F0}, {vN7}, 2, {F0}')
    q(f'v_add_u32 {vOut}, {u1}, {F0}')
    q(f's_mul_i32 {u1}, {u3}, {PH}'); q(f's_add_u32 {u1}, {u1}, {PB + PR}')
    q(f'v_lshl_add_u32 {vRl}, {vL}, 3, {u1}')
    q(f's_lshl_b32 {u2}, {sH}, 6'); q(f's_add_u32 {u1}, {u1}, {u2}')
    q(f'v_lshl_add_u32 {vRs}, {vN}, 2, {u1}')
    q(f's_add_u32 {u1}, {sPH}, {PYL}')
    q(f'v_lshl_add_u32 {F0}, {vG}, 7, {F5}')
    q(f'v_add_u32 {vYl}, {u1}, {F0}')
    q(f's_lshl_b32 {u2}, {sW}, 9'); q(f's_add_u32 {u1}, {u1}, {u2}'); q(f's_lshl4_add_u32 {u1}, {sJ}, {u1}')
    q(f'v_lshlrev_b32 {F0}, 1, {vN7}')
    q(f'v_lshl_add_u32 {F0}, {F4}, 7, {F0}')
    q(f'v_lshl_add_u32 {F0}, {vNH}, 8, {F0}')
    q(f'v_add_u32 {vYs}, {u1}, {F0}')
    q(f'v_lshlrev_b32 {F2}, 4, {F1}')
    q(f's_mov_b32 {u1}, 0xffff')
    q(f'v_lshlrev_b32 {F2}, {F2}, {u1}')
    q(f'v_lshrrev_b32 {F0}, 1, {vN7}')
    for d in range(4): q(f'v_cmp_eq_u32 vcc, {d}, {F0}', f'v_cndmask_b32 {v(vMask+d)}, 0, {F2}, vcc')
    q(f'v_mov_b64 {v(vZero,2)}, 0')
    q('s_mov_b32 s56, 0x00ff00ff'); q('s_mov_b32 s57, 0xff00ff00')
    mark('all')

    def dma(vaddr, base, flag, step=None, k=0):
        if step is not None: a(f's_add_u32 m0, m0, {step}')
        fill(k)
        return a(f'global_load_lds_dwordx4 {vaddr}, {base}{flag}')

    a('s_load_dwordx16 s[4:19], s[0:1], 0')
    a('s_load_dwordx8 s[20:27], s[0:1], 64')
    a('s_load_dwordx2 s[28:29], s[0:1], 96')
    a('s_cmp_ge_u32 s2, 256')
    a('s_cbranch_scc1 Lend')
    a('s_getpc_b64 s[64:65]')
    a.label('Lpc')
    a(f'v_lshlrev_b32 {T0}, 7, v0')
    a(f'v_min_u32 {T0}, Lcode_end-Lpc-4, {T0}')
    a(f'global_load_dword {vJunk}, {T0}, s[64:65]')
    stamp('start')
    a(f'v_lshrrev_b32 {T2}, 6, v0')
    a(f'v_and_b32 {vL}, 63, v0')
    a(f'v_readfirstlane_b32 {sW}, {T2}')
    a(f's_and_b32 {sXCD}, s2, 7')
    a(f's_lshr_b32 {sI}, s2, 3')
    a(f's_lshr_b32 {u1}, {sI}, 3')
    a(f's_lshl2_add_u32 {sH}, {sXCD}, {u1}')
    a(f's_and_b32 {sJ}, {sI}, 7')
    a(f's_lshl3_add_u32 {sFG}, {u1}, {sXCD}')
    a(f'v_lshrrev_b32 {vG}, 4, {vL}')
    a(f'v_and_b32 {vN}, 15, v0')
    a(f'v_lshlrev_b32 {vSW}, 2, {vG}')
    a(f'v_xor_b32 {vSW}, {vSW}, {vN}')
    a(f'v_lshlrev_b32 {vSW}, 4, {vSW}')
    a(f's_lshr_b32 {u1}, {sW}, 1')
    a(f's_and_b32 {u2}, {sW}, 1')
    a(f's_lshl3_add_u32 {u1}, {u1}, {u2}')
    a(f's_lshl4_add_u32 {u1}, {sJ}, {u1}')
    a(f's_lshl_b32 {u1}, {u1}, 15')
    a(f's_lshl_b32 {u2}, {sH}, 8')
    a(f's_add_u32 {u1}, {u1}, {u2}')
    a(f'v_lshl_add_u32 {v(vW)}, {vG}, 13, {vSW}')
    a(f'v_add_u32 {v(vW)}, {u1}, {v(vW)}')
    a(f's_mul_i32 {sM8}, {sW}, {WP}')
    a(f's_add_u32 m0, {sM8}, {R[3] + 4160}')
    a(f's_lshl_b32 {u2}, {sJ}, 7')
    a(f'v_lshl_add_u32 {vX}, {vG}, 4, {u2}')
    for p in range(1, 4): a(f'v_add_u32 {v(vW+p)}, {65536*p}, {v(vW)}')
    a(f's_mov_b32 {sTry}, 0')
    a(f's_mov_b32 {sLoc}, 0')
    if want: a(f's_mov_b32 {sCnt}, 0')
    fill(o['k0'])
    a('s_waitcnt lgkmcnt(0)')
    stamp('karg')
    a(f's_load_dword {sT}, {sWS}, 0')
    for p in range(4): dma(v(vW + p), sWQ, ntw, 1040 if p else None)
    a(f'global_load_dwordx4 {v(vXo,4)}, {vX}, {sX}')
    tX = a(f'global_load_dwordx4 {v(vXo+4,4)}, {vX}, {sX} offset:64')
    if o['bar0']: a('s_barrier')
    a(f's_add_u32 m0, {sM8}, {R[3]}')
    for p in range(4): tUK = dma(v(vW + p), sWUK, ntw, 1040 if p else None, o['kf'])
    need('poison')
    if o['loc0']:
        setexec(1)
        a(f'global_load_dword {vJunk}, {vQBs}, {sWS} sc1')
    setexec(0xfffff)
    a(f'global_store_dwordx4 {vP}, {v(vNeg,4)}, {sWS} sc1')
    setexec(-1)
    a(f'global_store_dwordx4 {vOl}, {v(vNeg,4)}, {sWS} sc1')
    a(f'global_store_dwordx4 {vOl}, {v(vNeg,4)}, {sWS} offset:1024 sc1')
    a(f's_cmp_eq_u32 {sW}, 3'); a('s_cselect_b64 exec, -1, 1')
    a(f'global_load_dwordx4 {v(vFg,4)}, {vHr}, {sX}')
    a(f'global_load_dwordx4 {v(vFg+4,4)}, {vHr}, {sGW}')
    setexec(-1)
    a(f's_lshl_b32 {t2}, {sKB}, 17')
    for s in range(4):
        lo = 42 + 2 * s
        if o['rot']:
            a(f's_add_u32 {t3}, {sHG}, {s}'); a(f's_and_b32 {t3}, {t3}, 3'); a(f's_lshl_b32 {t3}, {t3}, 15'); a(f's_add_u32 {t3}, {t3}, {t2}')
            a(f's_add_u32 s{lo}, s6, {t3}'); a(f's_addc_u32 s{lo+1}, s7, 0')
        elif s == 0:
            a(f's_add_u32 s42, s6, {t2}'); a('s_addc_u32 s43, s7, 0')
        else:
            a(f's_add_u32 s{lo}, s{lo-2}, 32768'); a(f's_addc_u32 s{lo+1}, s{lo-1}, 0')
    a(f'v_lshlrev_b32 {vHr}, 4, {vG}')
    a(f'v_add_u32 {vHr}, {HH}, {vHr}')
    def stage(s, side=()):
        side = list(side); per = (len(side) + 7) // 8
        a(f's_add_u32 m0, {sM8}, {R[s]}')
        for p in range(8):
            t = dma(v(vCK + p), sCK[s], ntc, 1040 if p else None, o['kf'])
            for l in side[per*p:per*p + per]: a(l)
        return t
    tS = [None] * 4
    if o['s0'] == 'pre': tS[0] = stage(0)
    stamp('issued')
    need('B')
    a('s_waitcnt lgkmcnt(0)')
    a(f's_add_u32 {sT}, {sT}, 0x9e3779b1')
    a(f'v_mov_b32 {v(vPub+1)}, {sT}'); a(f'v_mov_b32 {v(vPq+1)}, {sT}'); a(f'v_mov_b32 {v(vPq+3)}, {sT}')

    a.wait(tX)
    a('s_barrier')
    stamp('wq')
    tr = {}
    for b in range(2):
        for ks in range(2):
            for u in range(2):
                tr[b, ks] = a(f'ds_read_b64_tr_b16 {v(vA + 8*b + 4*ks + 2*u, 2)}, {vTR3} offset:{WP*(2*ks + u) + 4160 + 16*b}')
    for b in range(2):
        for ks in range(2):
            a.wait(tr[b, ks])
            mfma(vS + 4*b, v(vA + 8*b + 4*ks, 4), v(vXo + 4*ks, 4), v(vS + 4*b, 4) if ks else '0')
    a(f'v_cvt_pk_bf16_f32 {T0}, {v(vS)}, {v(vS+1)}')
    a(f'v_cvt_pk_bf16_f32 {T1}, {v(vS+2)}, {v(vS+3)}')
    a(f'v_cvt_pk_bf16_f32 {T2}, {v(vS+4)}, {v(vS+5)}')
    a(f'v_cvt_pk_bf16_f32 {T3}, {v(vS+6)}, {v(vS+7)}')
    setexec(mQST)
    a(f'v_cndmask_b32 {v(vPq)}, {T0}, {T2}, {mN1}')
    a(f'v_cndmask_b32 {v(vPq+2)}, {T1}, {T3}, {mN1}')
    stq_far = f'global_store_dwordx4 {vQBs}, {v(vPq,4)}, {sWS} offset:-4096 sc1'
    ldq_far = f'global_load_dwordx4 {v(vE,4)}, {vQBl}, {sWS} offset:-4096 sc1'
    ldq = f'global_load_dwordx4 {v(vE,4)}, {vQBl}, {sWS} sc1'
    tq0 = a(f'global_store_dwordx4 {vQBs}, {v(vPq,4)}, {sWS}' if o['loc0'] else stq_far)
    setexec(-1)
    stamp('qpub')

    def sreads(s):
        return [f'ds_read_b128 {ac(128 + ((s*2 + i)*2 + k)*8 + 4*z, 4)}, {vSB} offset:{R[s&1] + 256*i + 64*(k^i) + 32*z}'
                for i in range(2) for k in range(2) for z in range(2)]
    def pvreads(s):
        return [f'ds_read_b64_tr_b16 {ac(((c*2 + b)*2 + (s>>1))*8 + 4*(s&1) + 2*u, 2)}, {v(vPV + c)} offset:{R[s&1] + 4160*u + 16*b}'
                for c in range(4) for b in range(2) for u in range(2)]

    a.wait(tq0)
    tQ = a(ldq if o['loc0'] else ldq_far)
    for ks in range(4): a(f'ds_read_b128 {v(vB + 4*ks, 4)}, {vUKr} offset:{16*ks}')
    rd0 = sreads(0) + pvreads(0)
    if o['s0'] != 'pre':
        tS[0] = stage(0)
    elif o['s1'] == 'gather':
        tS[1] = stage(1, rd0); rd0 = []
    else:
        for l in rd0: a(l)
        rd0 = []
    a.wait(tQ)
    a.label('Lq_chk')
    a(f'ds_write2_b32 {vQIw}, {v(vE)}, {v(vE+2)} offset0:0 offset1:1')
    a(f'v_bitop3_b32 {T0}, {v(vE+1)}, {v(vE+3)}, {sT} bitop3:0x7e')
    a(f'v_cmp_ne_u32 vcc, 0, {T0}')
    a('s_cbranch_vccnz Lq_retry')
    a.label('Lq_ok')
    pubq = [f's_mov_b64 exec, {mQST}', stq_far, 's_mov_b64 exec, -1']
    if o['loc0']:
        retry('q', [ldq], (o['nloc'], pubq, [ldq_far]))
        for l in pubq: a(l)
        a(f's_mov_b32 {sLoc}, 0')
    else: retry('q', [ldq_far])
    a.wait_all(lg=True)
    a('s_barrier')
    stamp('qgot')

    tq = [a(f'ds_read_b128 {v(vA + 4*ks, 4)}, {vQIr} offset:{16*ks}') for ks in range(4)]
    for ks in range(4):
        a.wait(tq[ks])
        mfma(vS, v(vA + 4*ks, 4), v(vB + 4*ks, 4), v(vS, 4) if ks else '0')
    fill(8)
    a(f'v_add_f32 {T0}, {v(vS)}, {v(vS+1)}')
    a(f'v_add_f32 {T1}, {v(vS+2)}, {v(vS+3)}')
    a(f'v_add_f32 {T2}, {T0}, {T1}')
    a(f'v_add_f32 {T0}, {T0}, {T1}')
    a(f'v_permlane16_swap_b32 {T0}, {T2}')
    a(f'v_add_f32 {T0}, {T0}, {T2}')
    a(f'v_mul_f32 {T1}, {T0}, {vScl}')
    a(f'v_mul_f32_dpp {T2}, {T0}, {vScl} quad_perm:[1,1,3,3]{DPP}')
    setexec(0x5555)
    a(f'v_cvt_pk_bf16_f32 {v(vPub)}, {T1}, {T2}')
    tqa = a(f'global_store_dwordx2 {vQAs}, {v(vPub,2)}, {sWS} sc1')
    if o['flag'] != 'no':
        setexec(1)
        a(f'global_store_dword {vFLs}, {v(vPub+1)}, {sWS}')
    setexec(-1)
    stamp('qapub')
    ldfl = f'global_load_dwordx2 {v(vFlg,2)}, {vFLl}, {sWS} sc1'
    if tS[1] is None:
        if rd0: a.wait(tS[0])
        tS[1] = stage(1, rd0)
    tS[2] = stage(2)
    if o['flag'] == 'mid': tFl = a(ldfl)
    a.wait(tS[1])
    tS[3] = stage(3, sreads(1) + pvreads(1))
    if o['flag'] == 'end': tFl = a(ldfl)
    need('all')
    a(f'v_add_u32 {vSB}, {R[2]}, {vSB}')
    for c in range(4): a(f'v_add_u32 {v(vPV+c)}, {R[2]}, {v(vPV+c)}')
    def wave_reduce(op, x, t):
        for m in ('quad_perm:[1,0,3,2]', 'quad_perm:[2,3,0,1]', 'row_half_mirror', 'row_mirror'):
            a(f'{op}_dpp {x}, {x}, {x} {m}{DPP}')
        for sw in (16, 32):
            a(f'v_mov_b32 {t}, {x}'); a(f'v_permlane{sw}_swap_b32 {t}, {x}'); a(f'{op} {x}, {x}, {t}')
    def gate():
        a(f's_cmp_lg_u32 {sW}, 3'); a('s_cbranch_scc1 Lg1'); a.begin_cond()
        a(f'v_dot2_f32_bf16 {T0}, {v(vFg)}, {v(vFg+4)}, 0')
        for r in range(1, 4): a(f'v_dot2_f32_bf16 {T0}, {v(vFg+r)}, {v(vFg+4+r)}, {T0}')
        wave_reduce('v_add_f32', T0, T1)
        a(f'v_mul_f32 {T0}, {f2u(-LOG2E):#x}, {T0}')
        a(f'v_exp_f32 {T0}, {T0}')
        a(f'v_add_f32 {T0}, 1.0, {T0}')
        a(f'v_rcp_f32 {T0}, {T0}')
        a(f'v_mov_b32 {T1}, {GG}')
        a(f'v_sub_f32 {vOmg}, 1.0, {T0}')
        a(f'v_mul_f32 {vOmg}, 0x3e000000, {vOmg}')
        a(f'ds_write_b32 {T1}, {T0}')
        a.end_cond('Lg1')
    rd2 = sreads(2) + pvreads(2)
    if o['flag'] == 'end':
        a.wait(tS[2])
        for l in rd2: a(l)
        rd2 = []
    if o['flag'] != 'no':
        a.wait(tFl)
        a.label('Lfl_chk')
        a(f'v_bitop3_b32 {T0}, {v(vFlg)}, {v(vFlg+1)}, {sT} bitop3:0x7e')
        a(f'v_cmp_ne_u32 vcc, 0, {T0}')
        a('s_cbranch_vccnz Lfl_retry')
        a.label('Lfl_ok'); retry('fl', [ldfl], limit=o['nflag'])
        a(f's_mov_b32 {sLoc}, 0')
    else:
        a.wait(tqa); nhop[0] += 1

    ldqa = [f'global_load_dwordx4 {v(vA + 4*y, 4)}, {vQAl}, {sWS} offset:{1024*y} sc1' for y in range(4)]
    tQA = [a(l) for l in ldqa]
    stamp('qaiss')
    def ld(adr, base): return f'global_load_lds_dwordx4 {adr}, {base}{ntw}'
    uv = [(f's_mov_b32 m0, {sM8}', 's_nop 0', ld(vUV, sWUV))]
    uv += [('s_add_u32 m0, m0, 1040', f'v_add_u32 {vUV}, 8192, {vUV}', ld(vUV, sWUV))] * 3
    wo = [(f's_add_u32 m0, {sM8}, 4160', 's_nop 0', ld(vWOa, sWOp))]
    wo += [('s_add_u32 m0, m0, 1056', f'v_add_u32 {vWOa}, 8192, {vWOa}', ld(vWOa, sWOp))] * 3
    def ffw(base, adr, ptr, step):
        return [(f's_mul_i32 {t2}, {sW}, 2112', f's_add_u32 m0, {t2}, {base}', f's_mov_b64 exec, {mFFN}', ld(adr, ptr), 's_mov_b64 exec, -1'),
                ('s_add_u32 m0, m0, 1056', f'v_add_u32 {adr}, {step}, {adr}', f's_mov_b64 exec, {mFFN}', ld(adr, ptr), 's_mov_b64 exec, -1')]
    late = uv + ffw(W1, vW1a, sW1p, 22016) + wo + ffw(W2, vW2a, sW2p, 8192)
    tL = []
    def issue(n):
        for _ in range(n):
            if late:
                for l in late.pop(0): a(l)
                tL.append(a.lastvm())
    a.wait(tS[2])
    for k in range({'split': 6, 'all': 12, 'none': 0}[o['late']]):
        issue(1)
        for l in rd2[:4]: a(l)
        rd2 = rd2[4:]
    for l in rd2: a(l)
    gate()
    a.wait(tS[3])
    for l in sreads(3): a(l)
    pv3 = pvreads(3)
    if o['pv3'] == 'pre':
        for l in pv3: a(l)
        pv3 = []
    a.wait(tQA[0])
    a.label('Lqa_chk')
    for y in range(4):
        a.wait(tQA[y])
        a(f'ds_write2_b32 {v(vQ2w + (y>>1))}, {v(vA + 4*y)}, {v(vA + 4*y + 2)} offset0:{160*(y&1)} offset1:{160*(y&1) + 40}')
        a(f'v_bitop3_b32 {v(vT[y])}, {v(vA + 4*y + 1)}, {v(vA + 4*y + 3)}, {sT} bitop3:0x7e')
    tq = [a(f'ds_read_b128 {v(vS + 4*k, 4)}, {vQ2r} offset:{64*k}') for k in range(2)]
    a(f'v_or3_b32 {T0}, {T0}, {T1}, {T2}')
    a(f'v_or_b32 {T0}, {T0}, {T3}')
    a(f'v_cmp_ne_u32 vcc, 0, {T0}')
    a('s_cbranch_vccnz Lqa_retry')
    a.label('Lqa_ok'); retry('qa', ldqa)
    stamp('qagot')
    per = 2 if o['late'] == 'none' else 1
    issue(2*per)

    def spost(s):
        d = vSa + 8*s; x = vB + 4*s
        return [f'v_add_f32 {v(x)}, {v(d)}, {v(d+1)}', f'v_add_f32 {v(x+2)}, {v(d+2)}, {v(d+3)}',
                f'v_add_f32 {v(x+1)}, {v(d+4)}, {v(d+5)}', f'v_add_f32 {v(x+3)}, {v(d+6)}, {v(d+7)}',
                f'ds_write_b128 {vSXw}, {v(x,4)} offset:{256*s}']
    for s in range(4):
        side = spost(s - 2) if s >= 2 else []
        for i in range(2):
            for k in range(2):
                a.wait(tq[k])
                smf(vSa + 8*s + 4*i, vS + 4*k, 128 + ((s*2 + i)*2 + k)*8)
                if side: a(side.pop(0))
                elif pv3: a(pv3.pop(0)); a(pv3.pop(0))
        for l in side: a(l)
    for l in spost(2) + spost(3): a(l)
    issue(per)
    a.wait_all(lg=True)
    a('s_barrier')
    stamp('sbar')
    tx = [a(f'ds_read_b128 {v(vA + 4*w, 4)}, {vSXr} offset:{WP*w}') for w in range(4)]
    issue(per)
    a.wait(tx[1])
    for r in range(4): a(f'v_add_f32 {v(vA + r)}, {v(vA + r)}, {v(vA + 4 + r)}')
    a.wait(tx[3])
    for r in range(4): a(f'v_add_f32 {v(vA + 8 + r)}, {v(vA + 8 + r)}, {v(vA + 12 + r)}')
    for r in range(4): a(f'v_add_f32 {v(vA + r)}, {v(vA + r)}, {v(vA + 8 + r)}')
    a(f'v_max_f32 {T0}, {v(vA)}, {v(vA+1)}')
    a(f'v_max_f32 {T1}, {v(vA+2)}, {v(vA+3)}')
    a(f'v_permlane32_swap_b32 {T0}, {T1}')
    a(f'v_max_f32 {T0}, {T0}, {T1}')
    for m in ('quad_perm:[1,0,3,2]', 'quad_perm:[2,3,0,1]', 'row_half_mirror'):
        a(f'v_max_f32_dpp {T0}, {T0}, {T0} {m}{DPP}')
    a(f'v_max_f32_dpp {T1}, {T0}, {T0} row_mirror{DPP}')
    a(f'v_max_f32_dpp {T0}, {T0}, {T0} row_mirror{DPP}')
    a(f'v_permlane16_swap_b32 {T0}, {T1}')
    a(f'v_max_f32 {T2}, {T0}, {T1}')
    a(f'v_max_f32 {T3}, {T0}, {T1}')
    a(f'v_max_f32 {v(vE)}, {T0}, {T1}')
    a(f'v_permlane32_swap_b32 {T2}, {T3}')
    for r in range(4): a(f'v_sub_f32 {v(vA + r)}, {v(vA + r)}, {T2 if r < 2 else T3}')
    for r in range(4): a(f'v_exp_f32 {v(vA + r)}, {v(vA + r)}')
    a(f'v_cvt_pk_bf16_f32 {T0}, {v(vA)}, {v(vA+1)}')
    a(f'v_cvt_pk_bf16_f32 {T1}, {v(vA+2)}, {v(vA+3)}')
    t = a(f'ds_write2_b32 {vPw}, {T0}, {T1} offset0:0 offset1:80')
    issue(per)
    a.wait(t)
    a('s_barrier')
    stamp('pbar')

    tp = [a(f'ds_read_b128 {v(vS + 4*k, 4)}, {vPr} offset:{64*k}') for k in range(2)]
    issue(12)
    L = v(vE + 1)
    a(f'v_add_f32 {L}, {v(vA)}, {v(vA+1)}')
    a(f'v_add_f32 {T1}, {v(vA+2)}, {v(vA+3)}')
    a(f'v_permlane32_swap_b32 {L}, {T1}')
    a(f'v_add_f32 {L}, {L}, {T1}')
    side = [[f'v_add_f32_dpp {L}, {L}, {L} {m}{DPP}'] for m in ('quad_perm:[1,0,3,2]', 'quad_perm:[2,3,0,1]', 'row_half_mirror')]
    side += [[f'v_add_f32_dpp {T1}, {L}, {L} row_mirror{DPP}', f'v_add_f32_dpp {L}, {L}, {L} row_mirror{DPP}'],
             [f'v_permlane16_swap_b32 {L}, {T1}'], [f'v_add_f32 {L}, {L}, {T1}'],
             ['s_mov_b32 exec_lo, 0xff', 's_mov_b32 exec_hi, 0xff', f'global_store_dwordx2 {vMLs}, {v(vE,2)}, {sWS} sc1', 's_mov_b64 exec, -1'], []]
    def opost(c):
        d = vO + 8*c
        return [[f'v_add_f32 {v(d)}, {v(d)}, {v(d+1)}', f'v_add_f32 {v(d+2)}, {v(d+2)}, {v(d+3)}'],
                [f'v_add_f32 {v(d+4)}, {v(d+4)}, {v(d+5)}'], [f'v_add_f32 {v(d+6)}, {v(d+6)}, {v(d+7)}', f'v_cvt_pk_bf16_f32 {v(vB + c)}, {v(d)}, {v(d+4)}'],
                [f'v_cvt_pk_bf16_f32 {v(vB + 4 + c)}, {v(d+2)}, {v(d+6)}']]
    side += opost(0) + opost(1)
    for c in range(4):
        for b in range(2):
            for k in range(2):
                a.wait(tp[k])
                smf(vO + 8*c + 4*b, vS + 4*k, ((c*2 + b)*2 + k)*8)
                for l in side.pop(0):
                    t = a(l)
                    if t: tMLs = t
    for grp in opost(2) + opost(3)[:3]:
        for l in grp: a(l)
    a(f'global_store_dwordx4 {vOs0}, {v(vB,4)}, {sWS} sc1')
    a(opost(3)[3][0])
    tOs = a(f'global_store_dwordx4 {vOs1}, {v(vB+4,4)}, {sWS} sc1')
    stamp('opub')

    a.wait(tL[5])
    a('s_barrier')
    tf1 = [a(f'ds_read_b64_tr_b16 {ac(aWF1 + 2*k, 2)}, {vTO2} offset:{4224*(k>>1) + 512*(k&1)}') for k in range(4)]
    for b in range(2):
        for k in range(4):
            a(f'ds_read_b64_tr_b16 {ac(aWD + 8*b + 2*k, 2)}, {vTR} offset:{WP*k + 16*b}')
    a(f'v_mov_b32 {T1}, {GG}')
    a(f'ds_read_b32 {vGate}, {T1}')
    a.wait(tf1[3])
    mfma(vS, v(vXo, 4), ac(aWF1, 4), '0')
    mfma(vS, v(vXo + 4, 4), ac(aWF1 + 4, 4), v(vS, 4))
    setexec(0xffff)
    a(f'v_mov_b32 {v(vPub)}, {v(vS)}')
    a(f'global_store_dwordx2 {vFs}, {v(vPub,2)}, {sWS} sc1')
    setexec(-1)

    vML = vE; vMr = vE + 2; vOg = vO
    ldml = [f'global_load_dwordx2 {v(vML,2)}, {vMLl}, {sWS} sc1',
            f'global_load_dword {v(vMr)}, {vMLr}, {sWS} sc1',
            f'global_load_dword {v(vMr+1)}, {vMLr}, {sWS} offset:64 sc1']
    ldo = [f'global_load_dwordx4 {v(vOg + 4*u, 4)}, {vOl}, {sWS} offset:{1024*u} sc1' for u in range(2)]
    if o['ogate'] == 'ack': a.wait(tMLs)
    elif o['ogate'] == 'ack2': a.wait(tOs)
    elif o['ogate'] != 'none': a.wait(tL[o['ogate']])
    for l in ldml: tML = a(l)
    if o['ogate'] == 'ack': a.wait(tOs)
    for l in ldo: tO = a(l)
    stamp('oiss')
    ldf = [f'global_load_dwordx4 {v(vFg + 4*y, 4)}, {vFl}, {sWS} offset:{1024*y} sc1' for y in range(4)]
    if o['loc3']: a(f'global_load_ushort {vJunk}, {vYs}, {sWS} sc1')
    a.wait(tML)
    a.label('Lml_chk')
    a(f'v_max3_u32 {T0}, {v(vML)}, {v(vML+1)}, {v(vMr)}')
    a(f'v_max_u32 {T0}, {T0}, {v(vMr+1)}')
    a(f'v_cmp_eq_u32 vcc, -1, {T0}')
    a(f'v_mov_b32 {T4}, {v(vML)}')
    a('s_cbranch_vccnz Lml_retry')
    a.label('Lml_ok'); retry('ml', ldml)
    a(f's_cmp_eq_u32 {sW}, 3'); a(f's_cselect_b64 exec, {mFFN}, 1')
    for l in ldf: tF = a(l)
    setexec(-1)
    wave_reduce('v_max_f32', T4, T1)
    for u in range(2): a(f'v_sub_f32 {v(vMr+u)}, {v(vMr+u)}, {T4}')
    for u in range(2): a(f'v_exp_f32 {v(vMr+u)}, {v(vMr+u)}')
    a(f'v_sub_f32 {T5}, {v(vML)}, {T4}')
    for u in range(2): a(f'v_cvt_pk_bf16_f32 {v(vMr+u)}, {v(vMr+u)}, {v(vMr+u)}')
    a(f'v_exp_f32 {T5}, {T5}')
    for u in range(2):
        for d in range(4): a(f'v_and_b32 {v(vA + 4*u + d)}, {v(vMr+u)}, {v(vMask+d)}')
    a(f'v_cvt_pk_bf16_f32 {T5}, {v(vZero)}, {T5}')
    a.wait(tO)
    a.label('Lo_chk')
    mfma(vS, v(vA, 4), v(vOg, 4), '0')
    mfma(vS, v(vA + 4, 4), v(vOg + 4, 4), v(vS, 4))
    a(f'v_max3_u32 {T0}, {v(vOg)}, {v(vOg+1)}, {v(vOg+2)}')
    a(f'v_max3_u32 {T1}, {v(vOg+3)}, {v(vOg+4)}, {v(vOg+5)}')
    a(f'v_max3_u32 {T0}, {T0}, {v(vOg+6)}, {v(vOg+7)}')
    a(f'v_max_u32 {T0}, {T0}, {T1}')
    a(f'v_cmp_eq_u32 vcc, -1, {T0}')
    a('s_cbranch_vccnz Lo_retry')
    a.label('Lo_ok'); retry('o', ldo)
    a(f'v_mul_f32 {T6}, {T5}, {v(vML+1)}')
    setexec(mCX)
    a(f'v_cvt_pk_bf16_f32 {v(vS+4)}, {v(vS)}, {v(vS+1)}')
    a(f'v_cvt_pk_bf16_f32 {v(vS+5)}, {v(vS+2)}, {v(vS+3)}')
    a(f'ds_write_b64 {vCXw}, {v(vS+4,2)}')
    setexec(-1)
    for m in ('quad_perm:[1,0,3,2]', 'quad_perm:[2,3,0,1]', 'row_half_mirror', 'row_mirror'):
        a(f'v_add_f32_dpp {T6}, {T6}, {T6} {m}{DPP}')
    a.wait_all(lg=True)
    a('s_barrier')
    stamp('ogot')

    tc = [a(f'ds_read_b128 {v(vA + 4*ks, 4)}, {vCXr} offset:{64*ks}') for ks in range(2)]
    for sw in (16, 32):
        a(f'v_mov_b32 {T1}, {T6}'); a(f'v_permlane{sw}_swap_b32 {T1}, {T6}'); a(f'v_add_f32 {T6}, {T6}, {T1}')
    a(f'v_rcp_f32 {T6}, {T6}')
    for ks in range(2):
        a.wait(tc[ks])
        for b in range(2):
            mfma(vS + 4*b, v(vA + 4*ks, 4), ac(aWD + 8*b + 4*ks, 4), v(vS + 4*b, 4) if ks else '0')
    rdw = [f'ds_read_b64_tr_b16 {ac(aWF2 + 2*k, 2)}, {vTO2} offset:{WP + 4224*(k>>1) + 512*(k&1)}' for k in range(4)]
    rdw += [f'ds_read_b64_tr_b16 {ac(aWE + 2*k, 2)}, {vTO} offset:{4160 + WP*(k>>1) + 512*(k&1)}' for k in range(8)]
    a(f'v_mul_f32 {T6}, {T6}, {vGate}')
    for l in rdw[:6]: a(l)
    a(f'v_add_f32 {T0}, {v(vS)}, {v(vS+1)}')
    a(f'v_add_f32 {T1}, {v(vS+2)}, {v(vS+3)}')
    a(f'v_add_f32 {T2}, {v(vS+4)}, {v(vS+5)}')
    a(f'v_add_f32 {T3}, {v(vS+6)}, {v(vS+7)}')
    a(f'v_add_f32 {T0}, {T0}, {T1}')
    a(f'v_add_f32 {T2}, {T2}, {T3}')
    for l in rdw[6:8]: a(l)
    a(f'v_permlane16_swap_b32 {T0}, {T2}')
    a(f'v_add_f32 {T0}, {T0}, {T2}')
    a(f'v_mul_f32 {T1}, {T0}, {T6}')
    a(rdw[8])
    a(f'v_mul_f32_dpp {T2}, {T0}, {T6} quad_perm:[1,1,3,3]{DPP}')
    setexec(0x55555555)
    a(f'v_cvt_pk_bf16_f32 {vYv}, {T1}, {T2}')
    sty_far = f'global_store_dword {vYs}, {vYv}, {sWS} offset:-2048 sc1'
    tY = a(f'global_store_dword {vYs}, {vYv}, {sWS}' if o['loc3'] else sty_far)
    setexec(-1)
    stamp('ypub')
    for l in rdw[9:]: a(l)
    ldy = [f'global_load_dwordx4 {v(vA + 4*ks, 4)}, {vYl}, {sWS} offset:{512*ks} sc1' for ks in range(4)]
    ldy_far = [f'global_load_dwordx4 {v(vA + 4*ks, 4)}, {vYl}, {sWS} offset:{512*ks - 2048} sc1' for ks in range(4)]
    if o['loc3']:
        a.wait(tY)
        ty = [a(l) for l in ldy]

    a(f'v_mov_b64 {v(vE,2)}, 0'); a(f'v_mov_b64 {v(vE+2,2)}, 0')
    a(f's_cmp_ge_u32 {sFG}, 22'); a('s_cbranch_scc1 Lnf'); a.begin_cond()
    a(f's_cmp_lg_u32 {sW}, 3'); a('s_cbranch_scc1 Lf1'); a.begin_cond()
    a.wait(tF)
    a.label('Lf_chk')
    for y in range(4): a(f'v_bitop3_b32 {v(vT[y])}, {v(vFg + 4*y + 1)}, {v(vFg + 4*y + 3)}, {sT} bitop3:0x7e')
    a(f'v_or3_b32 {T0}, {T0}, {T1}, {T2}')
    a(f'v_or_b32 {T0}, {T0}, {T3}')
    a(f'v_cmp_ne_u32 vcc, 0, {T0}')
    a('s_cbranch_vccnz Lf_retry')
    a.label('Lf_ok'); retry('f', ldf)
    for k in range(2):
        a(f'v_add_f32 {v(vT[k])}, {v(vFg + 2*k)}, {v(vFg + 4 + 2*k)}')
        a(f'v_add_f32 {v(vT[2+k])}, {v(vFg + 8 + 2*k)}, {v(vFg + 12 + 2*k)}')
    a(f'v_add_f32 {T0}, {T0}, {T2}')
    a(f'v_add_f32 {T1}, {T1}, {T3}')
    a(f'v_permlane32_swap_b32 {T0}, {T1}')
    a(f'v_add_f32 {T0}, {T0}, {T1}')
    a(f'v_mul_f32 {T1}, {f2u(-LOG2E):#x}, {T0}')
    a(f'v_exp_f32 {T1}, {T1}')
    a(f'v_mul_f32 {T0}, {T0}, {vOmg}')
    a(f'v_add_f32 {T1}, 1.0, {T1}')
    a(f'v_rcp_f32 {T1}, {T1}')
    a(f'v_cndmask_b32 {T0}, {T0}, {v(vZero)}, {mFZ}')
    a(f'v_mul_f32 {T0}, {T0}, {T1}')
    a(f'v_cvt_pk_bf16_f32 {T0}, {T0}, {T0}')
    a(f'ds_write_b16 {vHw}, {T0}')
    a.wait_all(lg=True)
    a.end_cond('Lf1')
    a('s_barrier')
    th = [a(f'ds_read_b128 {v(vB + 4*ks, 4)}, {vHr} offset:{64*ks}') for ks in range(2)]
    for ks in range(2):
        a.wait(th[ks])
        mfma(vE, v(vB + 4*ks, 4), ac(aWF2 + 4*ks, 4), v(vE, 4) if ks else '0')
    a.end_cond('Lnf')

    if not o['loc3']:
        a.wait_all(vm=True)
        ty = [a(l) for l in ldy_far]
    a.wait_all(lg=True)
    a.wait(ty[0])
    a.label('Ly_chk')
    for ks in range(4):
        a.wait(ty[ks])
        mfma(vS, v(vA + 4*ks, 4), ac(aWE + 4*ks, 4), v(vS, 4) if ks else v(vE, 4))
        a(f'v_max3_u32 {v(vT[ks])}, {v(vA + 4*ks)}, {v(vA + 4*ks + 1)}, {v(vA + 4*ks + 2)}')
    a(f'v_max3_u32 {T0}, {T0}, {v(vA+3)}, {v(vA+7)}')
    a(f'v_max3_u32 {T1}, {T1}, {v(vA+11)}, {v(vA+15)}')
    a(f'v_max3_u32 {T0}, {T0}, {T1}, {T2}')
    a(f'v_max_u32 {T0}, {T0}, {T3}')
    a(f'v_cmp_eq_u32 vcc, -1, {T0}')
    a('s_cbranch_vccnz Ly_retry')
    a.label('Ly_ok')
    puby = ['s_mov_b64 exec, 0x55555555', sty_far, 's_mov_b64 exec, -1']
    if o['loc3']: retry('y', ldy, (o['nloc'], puby, ldy_far))
    else: retry('y', ldy_far)
    a(f'v_add_f32 {T0}, {v(vS)}, {v(vS+1)}')
    a(f'v_add_f32 {T1}, {v(vS+2)}, {v(vS+3)}')
    a(f'v_add_f32 {T2}, {T0}, {T1}')
    a(f'v_add_f32 {T0}, {T0}, {T1}')
    a(f's_lshl2_add_u32 {t3}, {sJ}, {sW}')
    a(f'v_permlane16_swap_b32 {T0}, {T2}')
    setexec(0xffff)
    a(f'v_add_f32 {T0}, {T0}, {T2}')
    a(f'global_store_dword {vRs}, {T0}, {sWS} sc1')
    if o['loc3']:
        for l in puby[:2]: a(l)
    setexec(-1)
    stamp('rpub')

    a(f's_cmp_lg_u32 {t3}, {sH}'); a('s_cbranch_scc1 Lfin'); a.begin_cond()
    ldr = [f'global_atomic_or_x2 {v(vB + 2*y, 2)}, {vRl}, {v(vZero,2)}, {sWS} offset:{512*y} sc0 sc1' for y in range(4)]
    for l in ldr: a(l)
    a.wait_all(vm=True)
    a.label('Lr_chk')
    a(f'v_max3_u32 {T2}, {v(vB)}, {v(vB+1)}, {v(vB+2)}')
    a(f'v_max3_u32 {T3}, {v(vB+3)}, {v(vB+4)}, {v(vB+5)}')
    a(f'v_max3_u32 {T2}, {T2}, {v(vB+6)}, {v(vB+7)}')
    a(f'v_max_u32 {T2}, {T2}, {T3}')
    a(f'v_cmp_eq_u32 vcc, -1, {T2}')
    a(f'v_add_f32 {T0}, {v(vB)}, {v(vB+2)}')
    a('s_cbranch_vccnz Lr_retry')
    a.label('Lr_ok'); retry('r', ldr)
    a(f'v_add_f32 {T1}, {v(vB+1)}, {v(vB+3)}')
    a(f'v_add_f32 {T2}, {v(vB+4)}, {v(vB+6)}')
    a(f'v_add_f32 {T3}, {v(vB+5)}, {v(vB+7)}')
    a(f'v_add_f32 {T0}, {T0}, {T2}')
    a(f'v_add_f32 {T1}, {T1}, {T3}')
    a(f'v_permlane32_swap_b32 {T0}, {T1}')
    a(f'v_add_f32 {T0}, {T0}, {T1}')
    a(f'v_add_f32_dpp {T1}, {T0}, {T0} row_ror:8{DPP}')
    a(f'v_add_f32_dpp {T0}, {T0}, {T0} row_ror:8{DPP}')
    a(f'v_permlane16_swap_b32 {T0}, {T1}')
    a('s_mov_b32 exec_lo, 0xff'); a('s_mov_b32 exec_hi, 0xff')
    a(f'v_add_f32 {T0}, {T0}, {T1}')
    a(f'v_cvt_pk_bf16_f32 {T0}, {T0}, {T0}')
    a(f'global_store_short {vOut}, {T0}, {sOUT}')
    a(f's_cmp_lg_u32 {t3}, 0'); a('s_cbranch_scc1 Lfin')
    setexec(1)
    a(f'global_store_dword {v(vZero)}, {v(vPub+1)}, {sWS} sc1')
    a.end_cond('Lfin')
    stamp('end')
    if o['probe']:
        a('s_waitcnt lgkmcnt(0)')
        a.label('Lprobe')
        a('s_memrealtime s[72:73]'); a('s_waitcnt lgkmcnt(0)'); a('s_sub_u32 s72, s72, s70'); a('s_cmp_lt_u32 s72, 3000'); a('s_cbranch_scc1 Lprobe')
    if want:
        setexec(1)
        a('s_waitcnt lgkmcnt(0)')
        a(f's_lshl2_add_u32 {t2}, s2, {sW}'); a(f's_lshl_b32 {t2}, {t2}, 7'); a(f's_add_u32 {t2}, {t2}, {STAMP}')
        a(f'v_mov_b32 {T0}, {t2}')
        for k in range(len(names)):
            a(f'v_mov_b32 {T1}, s{STAMP0 + 2*k}')
            a(f'global_store_dword {T0}, {T1}, {sWS} offset:{4*k}')
        a(f'v_mov_b32 {T1}, {sCnt}')
        a(f'global_store_dword {T0}, {T1}, {sWS} offset:124')
    a.label('Lend')
    a('s_endpgm')
    a.tail.append('Lcode_end:')
    hdr = ''.join(l for l in open(f'cdna_kernels/{NAME}.s.ref').readlines()[:16])
    extra = f'; stamps={",".join(names)}\n; opts={kw}\n' if want else ''
    return f"""{hdr}{extra}; @launch grid=(256,1,1) block=(256,1,1) lds={LDS}
.amdgcn_target "amdgcn-amd-amdhsa--gfx950"
.text
.globl {NAME}_kernel
.p2align 8
.type {NAME}_kernel,@function
{NAME}_kernel:
{a.text()}
.section .rodata,"a"
.p2align 6
.amdhsa_kernel {NAME}_kernel
  .amdhsa_next_free_vgpr 512
  .amdhsa_next_free_sgpr 102
  .amdhsa_accum_offset 256
  .amdhsa_group_segment_fixed_size 0
  .amdhsa_kernarg_size 104
  .amdhsa_user_sgpr_count 2
  .amdhsa_user_sgpr_kernarg_segment_ptr 1
  .amdhsa_system_sgpr_workgroup_id_x 1
.end_amdhsa_kernel
""", nv[0], a.pads

if __name__ == '__main__':
    kw = {}
    for x in sys.argv[2:]:
        k, val = x.split('=')
        assert k in DEF, k
        kw[k] = int(val) if val.lstrip('-').isdigit() else val
    txt, nvg, pads = gen(**kw)
    open(sys.argv[1], 'w').write(txt)
    print(sys.argv[1], 'vgprs', nvg, 'pads', pads)
```

```python
import re

REG = re.compile(r'^(-|\|)?([vas])(\d+|\[(\d+):(\d+)\])\|?$')
TRANS = ('v_exp_', 'v_log_', 'v_rcp_', 'v_rsq_', 'v_sqrt_', 'v_sin_', 'v_cos_')

def regs(tok):
    tok = tok.strip()
    if tok in ('vcc', 'vcc_lo', 'vcc_hi'): return {('s', 'vcc')}
    if tok in ('exec', 'exec_lo', 'exec_hi'): return {('s', 'exec')}
    if tok == 'm0': return {('s', 'm0')}
    m = REG.match(tok)
    if not m: return set()
    f = m.group(2)
    if m.group(4) is not None:
        return {(f, r) for r in range(int(m.group(4)), int(m.group(5)) + 1)}
    return {(f, int(m.group(3)))}

class Ins:
    pass

def parse(text):
    i = Ins(); i.text = text
    parts = text.split(None, 1)
    mn = parts[0]; i.mn = mn
    rest = parts[1] if len(parts) > 1 else ''
    ops = []; depth = 0; cur = ''
    for ch in rest:
        if ch == '[': depth += 1
        if ch == ']': depth -= 1
        if ch == ',' and depth == 0:
            ops.append(cur.strip()); cur = ''
        else: cur += ch
    if cur.strip(): ops.append(cur.strip())
    mods = ''
    if ops:
        sp = ops[-1].split(None, 1)
        ops[-1] = sp[0]; mods = sp[1] if len(sp) > 1 else ''
    i.ops = ops; i.mods = mods
    R = [regs(o) for o in ops]
    U = lambda l: set().union(*l) if l else set()
    i.states = 1
    i.kind = 'other'; i.defs = set(); i.uses = set(); i.srcC = set(); i.ab = set(); i.data = set()
    i.dpp = 'dpp' in mn or 'quad_perm' in mods or 'row_' in mods
    i.trans = mn.startswith(TRANS); i.dot = mn.startswith('v_dot')
    if mn == 's_nop':
        i.states = int(ops[0]) + 1
    elif mn.startswith(('v_mfma', 'v_smfmac')):
        i.kind = 'mfma'; i.defs = R[0]; i.ab = R[1] | R[2]
        if mn.startswith('v_smfmac'):
            i.srcC = R[0]; i.ab |= R[3]
        else: i.srcC = R[3]
        i.uses = i.ab | i.srcC
    elif mn.startswith('v_'):
        i.kind = 'valu'
        if 'permlane' in mn and 'swap' in mn:
            i.defs = R[0] | R[1]; i.uses = R[0] | R[1]
        elif '_co_' in mn:
            i.defs = R[0] | R[1]; i.uses = U(R[2:])
        else:
            i.defs = R[0]; i.uses = U(R[1:])
            if mn.startswith(('v_fmac', 'v_dot2c', 'v_mac')) or i.dpp: i.uses |= R[0]
            if mn.startswith('v_cndmask') and len(ops) == 3: i.uses |= {('s', 'vcc')}
    elif mn.startswith('ds_'):
        i.kind = 'ds'
        if mn.startswith(('ds_read', 'ds_bpermute', 'ds_permute', 'ds_swizzle')) or '_rtn' in mn:
            i.defs = R[0]; i.uses = U(R[1:])
        else: i.uses = U(R)
    elif mn.startswith('global_'):
        i.kind = 'vmem'
        if 'load_lds' in mn:
            i.uses = U(R) | {('s', 'm0')}
        elif 'load' in mn:
            i.defs = R[0]; i.uses = U(R[1:])
        elif 'store' in mn:
            i.uses = U(R)
            if mn.endswith(('x3', 'x4')): i.data = R[1]
        elif 'atomic' in mn:
            if len(ops) == 4: i.defs = R[0]; i.uses = U(R[1:])
            else: i.uses = U(R)
    elif mn.startswith(('s_load', 's_memrealtime', 's_memtime')):
        i.kind = 'smem'; i.defs = R[0]; i.uses = U(R[1:])
    elif mn.startswith(('s_cmp', 's_cbranch', 's_branch', 's_waitcnt', 's_barrier', 's_endpgm', 's_setprio', 's_sleep', 's_bitcmp')):
        i.kind = 'sctl'; i.uses = U(R)
    elif mn.startswith('s_'):
        i.kind = 'salu'; i.defs = R[0]; i.uses = U(R[1:])
        if 'saveexec' in mn: i.defs |= {('s', 'exec')}
    return i

def vec(s): return {r for r in s if r[0] in 'va'}
def sca(s): return {r for r in s if r[0] == 's'}

def need(p, c):
    n = 0
    if p.kind == 'valu':
        pv = vec(p.defs); ps = sca(p.defs)
        if c.kind == 'mfma' and pv & c.uses: n = max(n, 2)
        if c.kind == 'valu':
            if (c.dpp or 'permlane' in c.mn) and pv & c.uses: n = max(n, 2)
            if c.mn.startswith(('v_readlane', 'v_readfirstlane')) and pv & c.uses: n = max(n, 1)
            if p.trans and pv & c.uses: n = max(n, 1)
            if ps & c.uses: n = max(n, 4 if 'lane' in c.mn else 2)
            if 'op_sel' in p.mods or 'sdwa' in p.mn:
                if pv & (c.uses | c.defs): n = max(n, 1)
        if c.kind == 'vmem' and ps & c.uses: n = max(n, 5)
        if p.dot and pv & (c.uses | c.defs):
            if not (c.mn == p.mn and not (pv & (regs(c.ops[1]) | regs(c.ops[2])))): n = max(n, 3)
    if c.kind == 'valu' and c.dpp and p.kind in ('ds', 'vmem') and vec(p.defs) & c.uses: n = max(n, 2)
    if p.kind == 'mfma':
        if c.kind == 'mfma':
            if p.defs & c.ab: n = max(n, 8)
            if p.defs & c.srcC and p.defs != c.srcC: n = max(n, 6)
            if p.defs & c.defs and p.defs != c.srcC: n = max(n, 6)
        elif c.kind in ('valu', 'vmem', 'ds'):
            if p.defs & (c.uses | c.defs): n = max(n, 8)
            if p.srcC & c.defs: n = max(n, 3)
    if p.kind == 'salu' and ('s', 'm0') in p.defs and c.kind == 'vmem' and 'load_lds' in c.mn: n = max(n, 1)
    if p.data and p.data & c.defs: n = max(n, 2 if c.kind == 'valu' else 1)
    return n

class Asm:
    def __init__(self):
        self.out = []; self.hists = [[]]
        self.vm = 0; self.lg = 0; self.vm_done = 0; self.lg_done = 0
        self.cond = 0; self.saved = []
        self.tail = []
        self.pads = 0
    def raw(self, text):
        self.out.append(text)
    def label(self, name):
        self.out.append(name + ':')
    def comment(self, text):
        self.out.append('; ' + text)
    def __call__(self, text):
        tok = None
        for t in text.strip().split('\n'):
            t = t.strip()
            if t: tok = self.one(t)
        return tok
    def one(self, text):
        c = parse(text)
        pad = 0
        for hist in self.hists:
            gap = 0
            for p in reversed(hist):
                pad = max(pad, need(p, c) - gap)
                gap += p.states
                if gap >= 10: break
        if pad > 0:
            self.pads += pad
            nop = parse(f's_nop {pad-1}')
            self.out.append('  ' + nop.text)
            for hist in self.hists: hist.append(nop)
        self.out.append('  ' + text)
        uniq = []
        for hist in self.hists:
            hist.append(c); h = hist[-12:]
            if h not in uniq: uniq.append(h)
        self.hists = uniq
        if c.kind == 'vmem':
            self.vm += 1; return ('vm', self.vm)
        if c.kind == 'ds':
            self.lg += 1; return ('lg', self.lg)
        return None
    def wait(self, *toks):
        v = l = None
        for k, n in [t for t in toks if t]:
            if k == 'vm' and n > self.vm_done:
                x = min(63, self.vm - n); v = x if v is None else min(v, x)
            if k == 'lg' and n > self.lg_done:
                x = min(15, self.lg - n); l = x if l is None else min(l, x)
        s = []
        if v is not None: s.append(f'vmcnt({v})'); self.vm_done = self.vm - v
        if l is not None: s.append(f'lgkmcnt({l})'); self.lg_done = self.lg - l
        if s: self.one('s_waitcnt ' + ' '.join(s))
    def wait_all(self, vm=False, lg=False):
        s = []
        if vm: s.append('vmcnt(0)'); self.vm_done = self.vm
        if lg: s.append('lgkmcnt(0)'); self.lg_done = self.lg
        self.one('s_waitcnt ' + ' '.join(s))
    def lastvm(self): return ('vm', self.vm)
    def lastlg(self): return ('lg', self.lg)
    def begin_cond(self):
        self.saved.append((self.vm, self.lg, self.vm_done, self.lg_done, [list(h) for h in self.hists]))
    def end_cond(self, label):
        vm, lg, vd, ld, hists = self.saved.pop()
        self.vm, self.lg = vm, lg
        self.vm_done, self.lg_done = min(vd, vm - 1), min(ld, lg - 1)
        self.hists += hists
        self.label(label)
        return ('vm', vm), ('lg', lg)
    def fork(self, label):
        sv = (self.out, self.vm, self.lg, self.vm_done, self.lg_done, [list(h) for h in self.hists])
        self.out = [label + ':']
        return sv
    def unfork(self, sv):
        self.tail += self.out; h = self.hists
        self.out, self.vm, self.lg, self.vm_done, self.lg_done, self.hists = sv
        return h
    def join(self, label, hists):
        self.hists += hists
        self.label(label)
    def text(self):
        return '\n'.join(self.out + self.tail)
```

```python
import sys, struct, math
from asmlib import Asm
NAME = 'gated_mix__compressed_kv_cla__dense_activation_silu__decode'
DEF = dict(st='', ntw=1, ntc=0, maxtry=20000, probe='', clk=0, k0=0, kf=12, bar0=1, qw=9, qpos=32, fpos=0, w0=0, w1=0, touch=1,
           sa=0, sk=60, uk=0, uq=0, ku=0, po=1, sdel=0, pf=1, thr=0, qap=0, sord=0,
           nflag=12, loc0=1, loc3=1, nloc=12, late='split', pv3='gap', ogate='ack')
ALLST = 'start,karg,issued,wq,qpub,qgot,qapub,qaiss,qagot,sbar,pbar,opub,oiss,ogot,ypub,rpub,end'
def f2u(x): return struct.unpack('<I', struct.pack('<f', x))[0]
LOG2E = 1.4426950408889634

FLG, QA, QB, FB, PB, OB = 0x1000, 0x10000, 0x40000, 0x20000, 0x80000, 0x100000
PH = 10240; PR = 4096; PYG = 6144; PYL = 8192
STAMP = 128 << 20
WP = 8448
R = [0, 4*WP, 8*WP, 12*WP]
W1 = 16*WP; W2 = 17*WP; PI = QI = 18*WP
CX = PI + 2560; HH = CX + 1280; GG = HH + 128
LDS = GG + 64
SX = R[1]; Q2 = R[1] + 4608

def gen(**kw):
    o = dict(DEF); o.update(kw)
    a = Asm()
    ntw = ' nt' if o['ntw'] else ''
    ntc = ' nt' if o['ntc'] else ''
    sX, sCKV, sWQ, sWUK, sWUV, sWOp, sW1p, sW2p, sGW, sOUT, sWS = 's[4:5]', 's[6:7]', 's[8:9]', 's[10:11]', 's[12:13]', 's[14:15]', 's[18:19]', 's[20:21]', 's[22:23]', 's[24:25]', 's[28:29]'
    sW, sT, sH, sJ, sXCD, sI, sHG, sKB, sLoc, sFG, sFC, sM8 = 's30', 's31', 's32', 's33', 's34', 's35', 's36', 's37', 's38', 's39', 's40', 's41'
    sCK = ['s[42:43]', 's[44:45]', 's[46:47]', 's[48:49]']
    mN1, mQST, mCX, mFFN, mFZ = 's[50:51]', 's[52:53]', 's[56:57]', 's[60:61]', 's[62:63]'
    u1, u2, u3, sPH = 's54', 's55', 's58', 's59'
    t2, t3 = 's64', 's65'
    sTry, sCnt = 's66', 's3'
    STAMP0 = 68
    want = (ALLST if o['st'] == 'all' else o['st']).split(',') if o['st'] else []
    names = []
    def stamp(name):
        if name in want:
            r = STAMP0 + 2 * len(names); assert r <= 100
            a(f's_mem{"" if o["clk"] else "real"}time s[{r}:{r+1}]'); names.append(name)
        if o['probe'] == name: a('s_memrealtime s[70:71]')
    nv = [1]
    def V(n=1, al=1):
        r = (nv[0] + al - 1) // al * al; nv[0] = r + n; assert nv[0] <= 256, nv[0]; return r
    def v(r, n=1): return f'v{r}' if n == 1 else f'v[{r}:{r+n-1}]'
    def ac(r, n=1): return f'a{r}' if n == 1 else f'a[{r}:{r+n-1}]'
    vL, vG, vN, vSW, vR2, vQ2, vN7, vNH, vIdx = [v(V()) for _ in range(9)]
    vT = [V() for _ in range(7)]
    T0, T1, T2, T3, T4, T5, T6 = [v(x) for x in vT]
    F0, F1, F2, F3, F4, F5 = [v(V()) for _ in range(6)]
    vW = V(4); vCK = V(8); vPV = V(4); vQ2w = V(2); vMask = V(4)
    (vX, vP, vTR, vTR3, vUKr, vSB, vTO, vTO2, vQBs, vQBl, vQIw, vQIr, vQAs, vQAl, vQ2r, vFLs, vFLl, vSXw, vSXr, vPw, vPr,
     vMLs, vOs0, vOs1, vOl, vMLl, vMLr, vCXw, vCXr, vUV, vWOa, vW1a, vW2a, vFs, vFl, vHw, vHr, vYs, vYl, vRs, vRl, vOut,
     vGate, vOmg, vScl, vJunk, vYv) = [v(V()) for _ in range(47)]
    vZero = V(2, 2); vPub = V(2, 2); vFlg = V(2, 2)
    vNeg = V(4, 4); vXo = V(8, 4); vPq = V(4, 4)
    vSa = V(32, 4); vO = V(32, 4); vS = V(8, 4); vA = V(16, 4); vB = V(16, 4); vE = V(4, 4); vFg = V(16, 4)
    aWD, aWE, aWF1, aWF2, aUK = 128, 144, 160, 168, 224
    MF = 'v_mfma_f32_16x16x32_bf16'
    DPP = ' row_mask:0xf bank_mask:0xf'
    def mfma(d, x, y, c): a(f'{MF} {v(d,4)}, {x}, {y}, {c}')
    def smf(d, x, y): a(f'v_smfmac_f32_16x16x64_bf16 {v(d,4)}, {v(x,4)}, {ac(y,8)}, {vIdx}')
    def setexec(m):
        if isinstance(m, str): a(f's_mov_b64 exec, {m}')
        else: a(f's_mov_b64 exec, {m:#x}' if m > 64 else f's_mov_b64 exec, {m}')
    nhop = [0]
    def retry(name, loads, local=None, limit=None):
        t = a.tail
        t += [f'L{name}_retry:', '  s_nop 7', f'  s_add_u32 {sTry}, {sTry}, 1']
        if want: t += [f'  s_add_u32 {sCnt}, {sCnt}, {1 << (4*nhop[0])}']
        nhop[0] += 1
        t += [f'  s_cmp_gt_u32 {sTry}, {o["maxtry"]}', f'  s_cbranch_scc1 L{name}_ok', '  s_waitcnt lgkmcnt(0)']
        if limit:
            t += [f'  s_add_u32 {sLoc}, {sLoc}, 1', f'  s_cmp_gt_u32 {sLoc}, {limit}', f'  s_cbranch_scc1 L{name}_ok']
        if local:
            t += [f'  s_add_u32 {sLoc}, {sLoc}, 1', f'  s_cmp_ge_u32 {sLoc}, {local[0]}', f'  s_cbranch_scc1 L{name}_far']
        t += ['  ' + l for l in loads]
        t += ['  s_waitcnt vmcnt(0)', '  s_nop 1', f'  s_branch L{name}_chk']
        if local:
            t += [f'L{name}_far:', f'  s_cmp_lg_u32 {sLoc}, {local[0]}', f'  s_cbranch_scc1 L{name}_far2']
            t += ['  ' + l for l in local[1]]
            t += [f'L{name}_far2:']
            t += ['  ' + l for l in local[2]]
            t += ['  s_waitcnt vmcnt(0)', '  s_nop 1', f'  s_branch L{name}_chk']

    fq = []
    role = ['']
    def q(*lines): fq.append((role[0],) + lines)
    def mark(n): fq.append(n)
    done = set()
    def fill(n):
        while fq and (n > 0 or isinstance(fq[0], str)):
            x = fq.pop(0)
            if isinstance(x, str): done.add(x); continue
            if x[0] and x[0] != role[0]:
                assert role[0]; continue
            for l in x[1:]: a(l)
            n -= len(x) - 1
    def need(n):
        while n not in done: fill(1)

    q(f'v_lshl_add_u32 {v(vCK)}, {vG}, 10, {vSW}')
    q(f's_lshl_b32 {u1}, {sW}, 8')
    q(f'v_add_u32 {v(vCK)}, {u1}, {v(vCK)}')
    q(f's_lshl3_add_u32 {sKB}, {sXCD}, {sJ}')
    q(f'v_bfe_u32 {vR2}, v0, 2, 2')
    q(f'v_and_b32 {vQ2}, 3, v0')
    q(f'v_and_b32 {vN7}, 7, v0')
    q(f'v_bfe_u32 {vNH}, v0, 3, 1')
    q(f'v_mul_u32_u24 {F0}, 1040, {vG}')
    q(f'v_lshl_add_u32 {F0}, {vR2}, 8, {F0}')
    q(f'v_and_b32 {F1}, 2, v0')
    q(f'v_lshl_add_u32 {F0}, {F1}, 4, {F0}')
    q(f'v_and_b32 {F1}, 1, v0')
    q(f'v_lshl_add_u32 {F5}, {F1}, 3, {F0}')
    q(f'v_xor_b32 {F2}, {sW}, {vR2}')
    q(f'v_lshl_add_u32 {vTR}, {F2}, 6, {F5}')
    q(f'v_add_u32 {vTR3}, {R[3]}, {vTR}')
    q(f's_lshl_b32 {u1}, {sH}, 13'); q(f's_add_u32 {u1}, {u1}, {QB + 4096}')
    q(f'v_lshl_add_u32 {vQBl}, v0, 4, {u1}')
    q(f's_lshl2_add_u32 {u3}, {sJ}, {sW}'); q(f's_lshl_b32 {u2}, {u3}, 7'); q(f's_add_u32 {u1}, {u1}, {u2}')
    q(f'v_lshlrev_b32 {F0}, 5, {vG}')
    q(f'v_lshl_add_u32 {F0}, {vN}, 4, {F0}')
    q(f'v_add_u32 {vQBs}, {u1}, {F0}')
    q(f's_mul_i32 {sPH}, {sH}, {PH}'); q(f's_add_u32 {sPH}, {sPH}, {PB}')
    q(f's_lshl_b32 {u1}, {sH}, 16'); q(f's_lshl_b32 {u2}, {u3}, 11'); q(f's_add_u32 {u1}, {u1}, {u2}'); q(f's_add_u32 {u1}, {u1}, {OB}')
    q(f'v_lshl_add_u32 {vOl}, {vL}, 4, {u1}')
    q('s_mov_b32 s50, 0x00020002'); q('s_mov_b32 s51, s50')
    q('s_mov_b32 s52, 0x00030003'); q('s_mov_b32 s53, s52')
    q(f'v_lshlrev_b32 {vHr}, 4, {vL}')
    mark('head')
    role[0] = 'S'
    q(f's_lshr_b32 {u2}, {sJ}, 1'); q(f's_lshl2_add_u32 {u2}, {u2}, {sW}'); q(f's_mul_i32 {u2}, {u2}, 640'); q(f's_add_u32 {u2}, {u2}, {sPH}')
    q(f'v_lshl_add_u32 {vP}, {vL}, 4, {u2}')
    q(f'v_xor_b32 {vQIw}, 0x2000, {vOl}')
    q(f'v_mov_b64 {v(vNeg,2)}, -1'); q(f'v_mov_b64 {v(vNeg+2,2)}, -1')
    mark('A')
    role[0] = 'U'
    q(f'v_lshrrev_b32 {F0}, 5, v0')
    q(f'v_and_b32 {F2}, 3, {F0}')
    q(f'v_lshlrev_b32 {F3}, 8, {F0}')
    q(f'v_lshl_add_u32 {F3}, {F2}, 4, {F3}')
    q(f'v_and_b32 {F2}, 4, {F0}')
    q(f'v_lshl_add_u32 {F3}, {F2}, 5, {F3}')
    q(f'v_and_b32 {F2}, 28, v0')
    q(f'v_lshl_add_u32 {F3}, {F2}, 3, {F3}')
    q(f'v_lshl_add_u32 {F3}, {F1}, 4, {F3}')
    q(f'v_and_b32 {F2}, 2, v0')
    q(f'v_lshl_add_u32 {F3}, {F2}, 2, {F3}')
    q(f'v_add_u32 {vQIw}, {QI}, {F3}')
    q(f'v_and_b32 {F0}, 4, v0')
    q(f'v_lshlrev_b32 {F0}, 5, {F0}')
    q(f'v_lshl_add_u32 {F0}, {vQ2}, 4, {F0}')
    q(f'v_lshl_add_u32 {F0}, {vG}, 6, {F0}')
    q(f'v_lshl_add_u32 {F0}, {vN7}, 8, {F0}')
    q(f'v_add_u32 {vQIr}, {QI}, {F0}')
    q(f'v_mul_u32_u24 {F0}, 1040, {vR2}')
    q(f'v_lshl_add_u32 {F0}, {vQ2}, 8, {F0}')
    q(f'v_xor_b32 {F2}, {vG}, {vQ2}')
    q(f'v_lshl_add_u32 {F0}, {F2}, 6, {F0}')
    q(f's_add_u32 {u1}, {sM8}, {R[2]}')
    q(f'v_add_u32 {vUKr}, {u1}, {F0}')
    q(f's_lshr_b32 {u1}, {sH}, 3'); q(f's_lshr_b32 {u2}, {sJ}, 1'); q(f's_lshl2_add_u32 {u1}, {u1}, {u2}')
    q(f's_and_b32 {u2}, {sH}, 7'); q(f's_lshl3_add_u32 {u1}, {u1}, {u2}'); q(f's_and_b32 {u2}, {u3}, 7')
    q(f's_lshl3_add_u32 {u1}, {u1}, {u2}'); q(f's_lshl_b32 {u1}, {u1}, 6'); q(f's_add_u32 {u1}, {u1}, {QA}')
    q(f'v_lshl_add_u32 {vQAs}, {vN}, 2, {u1}')
    q(f'v_and_b32 {F0}, 16, v0')
    q(f'v_lshlrev_b32 {F0}, 4, {F0}')
    q(f'v_xor_b32 {vQAs}, {F0}, {vQAs}')
    q(f'v_mov_b32 {vScl}, {f2u(LOG2E / math.sqrt(128.0)):#x}')
    role[0] = ''
    if o['fpos']:
        q(f's_lshl_b32 {u1}, {sXCD}, 8'); q(f's_add_u32 {u1}, {u1}, {FLG}')
        q(f'v_lshl_add_u32 {vFLl}, {vL}, 2, {u1}')
        q(f's_lshr_b32 {u2}, {sI}, 1'); q(f's_lshl2_add_u32 {u2}, {u2}, {sW}'); q(f's_lshl2_add_u32 {u1}, {u2}, {u1}')
        q(f'v_mov_b32 {vFLs}, {u1}')
    for p in range(1, 8): q(f'v_add_u32 {v(vCK+p)}, {4096*p - 1040*(p&3)}, {v(vCK)}')
    q(f's_and_b32 {t3}, {sHG}, 2'); q(f's_lshl2_add_u32 {t2}, {sKB}, {t3}'); q(f's_lshl_b32 {t2}, {t2}, 15')
    for s in range(4):
        lo = 42 + 2 * s
        if s:
            for r in 'SU':
                role[0] = r; q(f's_xor_b32 {t2}, {t2}, {(3 if s == 2 else 1 if r == "S" and not o["sord"] else 2) << 15:#x}')
            role[0] = ''
        q(f's_add_u32 s{lo}, s6, {t2}', f's_addc_u32 s{lo+1}, s7, 0')
    mark('B')
    q(f'v_bfe_u32 {F0}, v0, 1, 3')
    q(f'v_mul_u32_u24 {F0}, 1040, {F0}')
    q(f'v_lshl_add_u32 {F0}, {F1}, 9, {F0}')
    q(f'v_and_b32 {F4}, 1, {vG}')
    q(f'v_xor_b32 {F2}, {F4}, {F1}')
    q(f'v_lshl_add_u32 {F0}, {F2}, 7, {F0}')
    q(f'v_lshrrev_b32 {F3}, 5, {vL}')
    q(f'v_lshl_add_u32 {F0}, {F3}, 4, {F0}')
    q(f'v_add_u32 {vSB}, {sM8}, {F0}')
    q(f'v_add_u32 {F5}, {sM8}, {F5}')
    q(f'v_lshl_add_u32 {v(vPV)}, {vR2}, 6, {F5}')
    for c in range(1, 4):
        q(f'v_xor_b32 {F2}, {c}, {vR2}')
        q(f'v_lshl_add_u32 {v(vPV+c)}, {F2}, 6, {F5}')
    q(f's_lshl2_add_u32 {u1}, {sHG}, {sW}'); q(f's_lshl_b32 {u1}, {u1}, 12'); q(f's_add_u32 {u1}, {u1}, {QA}')
    q(f'v_lshl_add_u32 {vQAl}, {vL}, 4, {u1}')
    q(f's_lshr_b32 {u1}, {sJ}, 1'); q(f's_and_b32 {u2}, {sW}, 1'); q(f's_lshl1_add_u32 {u1}, {u1}, {u2}')
    q(f's_and_b32 {u2}, {sJ}, 1'); q(f's_lshl2_add_u32 {u1}, {u1}, {u2}')
    q(f's_lshr_b32 {u2}, {sW}, 1'); q(f's_lshl2_add_u32 {u1}, {u1}, {u2}'); q(f's_lshl_b32 {u1}, {u1}, 15')
    q(f's_lshl_b32 {u2}, {sH}, 8'); q(f's_add_u32 {u1}, {u1}, {u2}')
    q(f'v_lshl_add_u32 {F0}, {F3}, 18, {vSW}')
    q(f'v_lshl_add_u32 {F0}, {F4}, 16, {F0}')
    q(f'v_add_u32 {vUV}, {u1}, {F0}')
    q(f'v_lshlrev_b32 {F5}, 4, {vN7}')
    q(f'v_lshlrev_b32 {F2}, 6, {F4}')
    q(f'v_xor_b32 {F2}, {F2}, {F5}')
    q(f'v_lshrrev_b32 {vMLr}, 3, {vL}')
    q(f'v_lshl_add_u32 {F0}, {vMLr}, 10, {F2}')
    q(f's_lshl2_add_u32 {u1}, {sH}, {sW}'); q(f's_lshl_b32 {u1}, {u1}, 15'); q(f's_lshl_b32 {u2}, {sJ}, 7'); q(f's_add_u32 {u1}, {u1}, {u2}')
    q(f'v_add_u32 {vWOa}, {u1}, {F0}')
    q(f's_lshl_b32 {sFC}, {sFG}, 6'); q(f's_min_u32 {sFC}, {sFC}, 1312')
    q(f's_lshl4_add_u32 {u1}, {sW}, {sFC}'); q(f's_lshl_b32 {u1}, {u1}, 10'); q(f's_add_u32 {u1}, {u1}, {u2}')
    q(f'v_add_u32 {vW2a}, {u1}, {F0}')
    q(f'v_mul_u32_u24 {F0}, 2752, {vMLr}')
    q(f'v_add_u32 {F0}, {F0}, {F2}')
    q(f's_mul_i32 {u1}, {u3}, {16*2752}'); q(f's_lshl1_add_u32 {u1}, {sFC}, {u1}')
    q(f'v_add_u32 {vW1a}, {u1}, {F0}')
    q(f's_cmp_lt_u32 {sFG}, 22', f's_cselect_b64 {mFFN}, -1, 1')
    q(f's_cmp_eq_u32 {sFG}, 21', 's_cselect_b32 s62, 0xffff, 0', 's_mov_b32 s63, s62')
    q(f'v_mul_u32_u24 {F0}, 160, {vN}')
    q(f'v_lshl_add_u32 {F0}, {vG}, 4, {F0}')
    q(f'v_add_u32 {vPr}, {PI}, {F0}')
    q(f's_add_u32 {u1}, {sM8}, {Q2}')
    q(f'v_add_u32 {vQ2r}, {u1}, {F0}')
    q(f'v_mul_u32_u24 {F0}, 320, {F3}')
    q(f'v_lshl_add_u32 {F0}, {vQ2}, 4, {F0}')
    q(f'v_and_or_b32 {F0}, v0, 4, {F0}')
    q(f'v_lshl_add_u32 {F0}, {vNH}, 6, {F0}')
    q(f'v_lshl_add_u32 {F0}, {F4}, 3, {F0}')
    q(f'v_add_u32 {v(vQ2w)}, {u1}, {F0}')
    q(f'v_add_u32 {v(vQ2w+1)}, 1280, {v(vQ2w)}')
    q(f'v_mul_u32_u24 {F0}, 0xaaaa, {F1}')
    q(f'v_add_u32 {vIdx}, 0x4444, {F0}')
    for r in range(0, 32, 2): q(f'v_mov_b64 {v(vSa+r,2)}, 0')
    q(f'v_lshlrev_b32 {F0}, 4, {vN}')
    q(f'v_lshl_add_u32 {F0}, {vG}, 10, {F0}')
    q(f's_add_u32 {u1}, {sM8}, {SX}')
    q(f'v_add_u32 {vSXw}, {u1}, {F0}')
    q(f's_lshl_b32 {u1}, {sW}, 10'); q(f's_add_u32 {u1}, {u1}, {SX}')
    q(f'v_lshl_add_u32 {vSXr}, {vL}, 4, {u1}')
    q(f'v_mul_u32_u24 {F0}, 160, {F1}')
    q(f'v_lshl_add_u32 {F0}, {vG}, 5, {F0}')
    q(f'v_and_or_b32 {F2}, v0, 6, {vNH}')
    q(f'v_lshl_add_u32 {F0}, {F2}, 2, {F0}')
    q(f's_mul_i32 {u1}, {sW}, 640'); q(f's_add_u32 {u1}, {u1}, {PI}')
    q(f'v_add_u32 {vPw}, {u1}, {F0}')
    for r in range(0, 32, 2): q(f'v_mov_b64 {v(vO+r,2)}, 0')
    q(f's_lshl2_add_u32 {u1}, {sHG}, {sW}'); q(f's_mul_i32 {u1}, {u1}, {2*PH}'); q(f's_lshl3_add_u32 {u1}, {sKB}, {u1}'); q(f's_add_u32 {u1}, {u1}, {PB}')
    q(f'v_mul_u32_u24 {F0}, {PH}, {F3}')
    q(f'v_lshl_add_u32 {F0}, {vN7}, 9, {F0}')
    q(f'v_add_u32 {vMLs}, {u1}, {F0}')
    q(f's_lshl_b32 {u1}, {sHG}, 19'); q(f's_lshl_b32 {u2}, {sW}, 14'); q(f's_add_u32 {u1}, {u1}, {u2}')
    q(f's_lshl_b32 {u2}, {sKB}, 7'); q(f's_add_u32 {u1}, {u1}, {u2}'); q(f's_add_u32 {u1}, {u1}, {OB}')
    q(f'v_lshl_add_u32 {F0}, {vG}, 17, {F5}')
    q(f'v_lshl_add_u32 {F0}, {vNH}, 13, {F0}')
    q(f'v_add_u32 {vOs0}, {u1}, {F0}')
    q(f'v_add_u32 {vOs1}, 65536, {vOs0}')
    q(f's_lshl_b32 {u1}, {sJ}, 9'); q(f's_add_u32 {u1}, {u1}, {sPH}')
    q(f'v_lshl_add_u32 {vMLl}, {vL}, 3, {u1}')
    q(f's_lshl_b32 {u2}, {sW}, 7'); q(f's_add_u32 {u1}, {u1}, {u2}')
    q(f'v_lshl_add_u32 {vMLr}, {vMLr}, 3, {u1}')
    q(f'v_mul_u32_u24 {F0}, 160, {vNH}')
    q(f'v_add_u32 {F0}, {F0}, {F5}')
    q(f'v_lshl_add_u32 {F0}, {F4}, 3, {F0}')
    q(f's_mul_i32 {u1}, {sW}, 320'); q(f's_add_u32 {u1}, {u1}, {CX}')
    q(f'v_add_u32 {vCXw}, {u1}, {F0}')
    q(f'v_mul_u32_u24 {F0}, 160, {vN7}')
    q(f'v_lshl_add_u32 {F0}, {vG}, 4, {F0}')
    q(f'v_add_u32 {vCXr}, {CX}, {F0}')
    q(f'v_mul_u32_u24 {F0}, 1056, {vG}')
    q(f'v_lshl_add_u32 {F0}, {vR2}, 7, {F0}')
    q(f'v_and_b32 {F2}, 2, {vR2}')
    q(f'v_xor_b32 {F2}, {sW}, {F2}')
    q(f'v_lshl_add_u32 {F0}, {F2}, 5, {F0}')
    q(f'v_lshl_add_u32 {vTO}, {vQ2}, 3, {F0}')
    q(f'v_add_u32 {vTO2}, {W1}, {vTO}')
    q(f's_lshl_b32 {u1}, {sFG}, 12'); q(f's_add_u32 {u1}, {u1}, {FB}')
    q(f'v_lshl_add_u32 {vFl}, {vL}, 4, {u1}')
    q(f's_lshl_b32 {u2}, {u3}, 7'); q(f's_add_u32 {u1}, {u1}, {u2}')
    q(f'v_lshl_add_u32 {vFs}, {vN}, 3, {u1}')
    q(f'v_and_b32 {F0}, 31, v0')
    q(f'v_lshl_add_u32 {F0}, {F0}, 1, {F3}')
    q(f'v_lshlrev_b32 {F0}, 1, {F0}')
    q(f'v_add_u32 {vHw}, {HH}, {F0}')
    q(f's_lshl_b32 {u1}, {u3}, 5')
    q(f'v_lshlrev_b32 {F0}, 1, {F3}')
    q(f'v_lshl_add_u32 {F0}, {vN7}, 2, {F0}')
    q(f'v_add_u32 {vOut}, {u1}, {F0}')
    q(f's_mul_i32 {u1}, {u3}, {PH}'); q(f's_add_u32 {u1}, {u1}, {PB + PR}')
    q(f'v_lshl_add_u32 {vRl}, {vL}, 3, {u1}')
    q(f's_lshl_b32 {u2}, {sH}, 6'); q(f's_add_u32 {u1}, {u1}, {u2}')
    q(f'v_lshl_add_u32 {vRs}, {vN}, 2, {u1}')
    q(f's_add_u32 {u1}, {sPH}, {PYL}')
    q(f'v_lshl_add_u32 {F0}, {vG}, 7, {F5}')
    q(f'v_add_u32 {vYl}, {u1}, {F0}')
    q(f's_lshl_b32 {u2}, {sW}, 9'); q(f's_add_u32 {u1}, {u1}, {u2}'); q(f's_lshl4_add_u32 {u1}, {sJ}, {u1}')
    q(f'v_lshlrev_b32 {F0}, 1, {vN7}')
    q(f'v_lshl_add_u32 {F0}, {F4}, 7, {F0}')
    q(f'v_lshl_add_u32 {F0}, {vNH}, 8, {F0}')
    q(f'v_add_u32 {vYs}, {u1}, {F0}')
    q(f'v_lshlrev_b32 {F2}, 4, {F1}')
    q(f's_mov_b32 {u1}, 0xffff')
    q(f'v_lshlrev_b32 {F2}, {F2}, {u1}')
    q(f'v_lshrrev_b32 {F0}, 1, {vN7}')
    for d in range(4): q(f'v_cmp_eq_u32 vcc, {d}, {F0}', f'v_cndmask_b32 {v(vMask+d)}, 0, {F2}, vcc')
    q(f'v_mov_b64 {v(vZero,2)}, 0')
    q('s_mov_b32 s56, 0x00ff00ff'); q('s_mov_b32 s57, 0xff00ff00')
    mark('all')

    def dma(vaddr, base, flag, p, k=0):
        fill(k)
        return a(f'global_load_lds_dwordx4 {vaddr}, {base} offset:{1040*(p&3)}{flag}')

    a('s_load_dwordx16 s[4:19], s[0:1], 0')
    a('s_load_dwordx8 s[20:27], s[0:1], 64')
    a('s_load_dwordx2 s[28:29], s[0:1], 96')
    a('s_cmp_ge_u32 s2, 256')
    a('s_cbranch_scc1 Lend')
    a('s_getpc_b64 s[64:65]')
    a.label('Lpc')
    a(f'v_lshlrev_b32 {T0}, 7, v0')
    a(f'v_min_u32 {T0}, Lcode_end-Lpc-4, {T0}')
    if o['pf']: a(f'global_load_dword {vJunk}, {T0}, s[64:65]')
    stamp('start')
    a(f'v_lshrrev_b32 {T2}, 6, v0')
    a(f'v_and_b32 {vL}, 63, v0')
    a(f'v_readfirstlane_b32 {sW}, {T2}')
    a(f's_and_b32 {sXCD}, s2, 7')
    a(f's_lshr_b32 {sI}, s2, 3')
    a(f's_lshr_b32 {u1}, {sI}, 3')
    a(f's_lshl2_add_u32 {sH}, {sXCD}, {u1}')
    a(f's_and_b32 {sJ}, {sI}, 7')
    a(f's_lshl3_add_u32 {sFG}, {u1}, {sXCD}')
    a(f's_add_u32 {u1}, {u1}, {sJ}')
    a(f's_and_b32 {sHG}, {u1}, 3')
    a(f'v_lshrrev_b32 {vG}, 4, {vL}')
    a(f'v_and_b32 {vN}, 15, v0')
    a(f'v_lshlrev_b32 {vSW}, 2, {vG}')
    a(f'v_xor_b32 {vSW}, {vSW}, {vN}')
    a(f'v_lshlrev_b32 {vSW}, 4, {vSW}')
    a(f's_lshr_b32 {u1}, {sW}, 1')
    a(f's_and_b32 {u2}, {sW}, 1')
    a(f's_lshl3_add_u32 {u1}, {u1}, {u2}')
    a(f's_lshl4_add_u32 {u1}, {sJ}, {u1}')
    a(f's_lshl_b32 {u1}, {u1}, 15')
    a(f's_lshl_b32 {u2}, {sH}, 8')
    a(f's_add_u32 {u1}, {u1}, {u2}')
    a(f'v_lshl_add_u32 {v(vW)}, {vG}, 13, {vSW}')
    a(f'v_add_u32 {v(vW)}, {u1}, {v(vW)}')
    a(f's_mul_i32 {sM8}, {sW}, {WP}')
    a(f's_add_u32 m0, {sM8}, {R[3] + 4160}')
    a(f's_lshl_b32 {u2}, {sJ}, 7')
    a(f'v_lshl_add_u32 {vX}, {vG}, 4, {u2}')
    for p in range(1, 4): a(f'v_add_u32 {v(vW+p)}, {(65536 - 1040)*p}, {v(vW)}')
    a(f's_mov_b32 {sTry}, 0')
    a(f's_mov_b32 {sLoc}, 0')
    if want: a(f's_mov_b32 {sCnt}, 0')
    fill(min(o['k0'], sum(len(x) - 1 for x in fq[:fq.index('head')])))
    a('s_waitcnt lgkmcnt(0)')
    stamp('karg')
    a(f's_load_dword {sT}, {sWS}, 0')
    for p in range(4): dma(v(vW + p), sWQ, ntw, p)
    a(f'global_load_dwordx4 {v(vXo,4)}, {vX}, {sX}')
    tX = a(f'global_load_dwordx4 {v(vXo+4,4)}, {vX}, {sX} offset:64')
    stamp('wqi')
    stq_far = f'global_store_dwordx4 {vQBs}, {v(vPq,4)}, {sWS} offset:-4096 sc1'
    ldq_far = f'global_load_dwordx4 {v(vE,4)}, {vQBl}, {sWS} offset:-4096 sc1'
    ldq = f'global_load_dwordx4 {v(vE,4)}, {vQBl}, {sWS} sc1'
    pubq = [f's_mov_b64 exec, {mQST}', stq_far, 's_mov_b64 exec, -1']
    tS = [None] * 4
    def ckdma(n, k=0):
        s, p = n >> 3, n & 7
        if p & 3 == 0: a(f's_add_u32 m0, {sM8}, {R[s] + 1040*p}')
        tS[s] = dma(v(vCK + p), sCK[s], ntc, p, k)
    def touch():
        if o['loc0'] and o['touch']:
            setexec(1)
            a(f'global_load_dword {vJunk}, {vQBs}, {sWS} sc1')
            setexec(-1)
    def gateld():
        a(f's_cmp_eq_u32 {sW}, 3'); a('s_cselect_b64 exec, -1, 1')
        a(f'global_load_dwordx4 {v(vFg,4)}, {vHr}, {sX}')
        a(f'global_load_dwordx4 {v(vFg+4,4)}, {vHr}, {sGW}')
        setexec(-1)
    def phaseA(tok):
        stamp('issued')
        a('s_waitcnt lgkmcnt(0)')
        a(f's_add_u32 {sT}, {sT}, 0x9e3779b1')
        a(f'v_mov_b32 {v(vPub+1)}, {sT}'); a(f'v_mov_b32 {v(vPq+1)}, {sT}'); a(f'v_mov_b32 {v(vPq+3)}, {sT}')
        a.wait(tok)
        a('s_barrier')
        stamp('wq')
        tr = {}
        for b in range(2):
            for ks in range(2):
                for u in range(2):
                    tr[b, ks] = a(f'ds_read_b64_tr_b16 {v(vA + 8*b + 4*ks + 2*u, 2)}, {vTR3} offset:{WP*(2*ks + u) + 4160 + 16*b}')
        for b in range(2):
            for ks in range(2):
                a.wait(tr[b, ks])
                mfma(vS + 4*b, v(vA + 8*b + 4*ks, 4), v(vXo + 4*ks, 4), v(vS + 4*b, 4) if ks else '0')
        a(f'v_cvt_pk_bf16_f32 {T0}, {v(vS)}, {v(vS+1)}')
        a(f'v_cvt_pk_bf16_f32 {T1}, {v(vS+2)}, {v(vS+3)}')
        a(f'v_cvt_pk_bf16_f32 {T2}, {v(vS+4)}, {v(vS+5)}')
        a(f'v_cvt_pk_bf16_f32 {T3}, {v(vS+6)}, {v(vS+7)}')
        setexec(mQST)
        a(f'v_cndmask_b32 {v(vPq)}, {T0}, {T2}, {mN1}')
        a(f'v_cndmask_b32 {v(vPq+2)}, {T1}, {T3}, {mN1}')
        t = a(f'global_store_dwordx4 {vQBs}, {v(vPq,4)}, {sWS}' if o['loc0'] else stq_far)
        if role[0] == 'S' and o['loc0']: a(stq_far)
        setexec(-1)
        stamp('qpub')
        return t

    a(f's_bitcmp1_b32 {sHG}, 0'); a('s_cbranch_scc1 Lspath')
    sv = a.fork('Lspath'); fq0, done0, names0 = list(fq), set(done), list(names)
    role[0] = 'S'
    need('A')
    touch()
    a('s_mov_b32 exec_hi, 0xff')
    tPo = a(f'global_store_dwordx4 {vP}, {v(vNeg,4)}, {sWS} sc1')
    setexec(-1)
    for adr in (vOl, vQIw) if o['po'] else ():
        for off in (0, 1024): tPo = a(f'global_store_dwordx4 {adr}, {v(vNeg,4)}, {sWS} offset:{off} sc1')
    gateld()
    stamp('uki')
    need('B'); fill(o['sk'])
    for n in range(o['sa']): ckdma(n, o['kf'])
    if o['sa'] < 8: need('all')
    phaseA(tPo if o['po'] < 2 else tX)
    a('s_barrier')
    stamp('uk4'); stamp('uk8'); stamp('qgot')
    if o['sdel']: a(f's_sleep {o["sdel"]}')
    stamp('qapub')
    for n in range(o['sa'], 16):
        if o['thr'] and n >= o['thr']: a(f's_waitcnt vmcnt({o["thr"] - 1})')
        ckdma(n, o['kf'])
    need('all')
    a('s_branch Lmerge')
    hS = a.unfork(sv)
    fq[:] = fq0; done.clear(); done.update(done0); names[:] = names0

    role[0] = 'U'
    a(f's_add_u32 m0, {sM8}, {R[2]}')
    if o['bar0']: a('s_barrier')
    tUK = []
    for p in range(8):
        if p == 4: a('s_add_u32 m0, m0, 4160')
        if p >= 4: a(f'v_xor_b32 {v(vW+p-4)}, 0x80000, {v(vW+p-4)}')
        tUK.append(dma(v(vW + (p&3)), sWUK, ntw, p, o['ku'] if p else 0))
    stamp('uki')
    need('A'); fill(o['uk'])
    touch()
    tq0 = phaseA(tX)

    def sreads(s):
        return [f'ds_read_b128 {ac(128 + ((s*2 + i)*2 + k)*8 + 4*z, 4)}, {vSB} offset:{R[s&1] + 256*i + 64*(k^i) + 32*z}'
                for i in range(2) for k in range(2) for z in range(2)]
    def pvreads(s):
        return [f'ds_read_b64_tr_b16 {ac(((c*2 + b)*2 + (s>>1))*8 + 4*(s&1) + 2*u, 2)}, {v(vPV + c)} offset:{R[s&1] + 4160*u + 16*b}'
                for c in range(4) for b in range(2) for u in range(2)]

    need('B'); fill(o['uq'])
    if 'uk4' in want: a.wait(tUK[3]); stamp('uk4')
    if 'uk8' in want: a.wait(tUK[7]); stamp('uk8')
    if o['qw']: a.wait((tUK + [tq0])[o['qw'] - 1])
    tQ = a(ldq if o['loc0'] else ldq_far)
    a.wait(tUK[7])
    for e in range(2):
        for ks in range(4): a(f'ds_read_b128 {ac(aUK + 16*e + 4*ks, 4)}, {vUKr} offset:{4160*e + 16*ks}')
    a.wait(tQ)
    a.label('Lq_chk')
    a(f'ds_write2_b32 {vQIw}, {v(vE)}, {v(vE+2)} offset0:0 offset1:1')
    a(f'v_bitop3_b32 {T0}, {v(vE+1)}, {v(vE+3)}, {sT} bitop3:0x7e')
    a(f'v_cmp_ne_u32 vcc, 0, {T0}')
    a('s_cbranch_vccnz Lq_retry')
    a.label('Lq_ok')
    if o['loc0']:
        retry('q', [ldq], (o['nloc'], pubq, [ldq_far]))
        for l in pubq: a(l)
        a(f's_mov_b32 {sLoc}, 0')
    else: retry('q', [ldq_far])
    a.wait_all(lg=True)
    a('s_barrier')
    stamp('qgot')

    tq = [a(f'ds_read_b128 {v(vA + 4*ks, 4)}, {vQIr} offset:{16*ks}') for ks in range(4)]
    for ks in range(4):
        a.wait(tq[ks])
        for e in range(2): mfma(vS + 4*e, v(vA + 4*ks, 4), ac(aUK + 16*e + 4*ks, 4), v(vS + 4*e, 4) if ks else '0')
    a(f'v_add_f32 {T0}, {v(vS)}, {v(vS+1)}')
    a(f'v_add_f32 {T1}, {v(vS+2)}, {v(vS+3)}')
    a(f'v_add_f32 {T0}, {T0}, {T1}')
    a(f'v_add_f32 {T2}, {v(vS+4)}, {v(vS+5)}')
    a(f'v_add_f32 {T3}, {v(vS+6)}, {v(vS+7)}')
    a(f'v_add_f32 {T2}, {T2}, {T3}')
    a(f'v_permlane16_swap_b32 {T0}, {T2}')
    a(f'v_add_f32 {T0}, {T0}, {T2}')
    a(f'v_mul_f32 {T1}, {T0}, {vScl}')
    a(f'v_mul_f32_dpp {T2}, {T0}, {vScl} quad_perm:[1,1,3,3]{DPP}')
    setexec(0x55555555)
    a(f'v_cvt_pk_bf16_f32 {v(vPub)}, {T1}, {T2}')
    a(f'global_store_dwordx2 {vQAs}, {v(vPub,2)}, {sWS} sc1')
    if o['fpos']:
        setexec(1)
        a(f'global_store_dword {vFLs}, {v(vPub+1)}, {sWS}')
    setexec(-1)
    stamp('qapub')
    for n in range(16):
        if n == 8: gateld()
        ckdma(n, o['kf'] if n else 0)
    need('all')
    a.join('Lmerge', hS)
    tS[0] = ('vm', a.vm - 8)
    a(f'v_lshlrev_b32 {vHr}, 4, {vG}')
    a(f'v_add_u32 {vHr}, {HH}, {vHr}')
    def wave_reduce(op, x, t):
        for m in ('quad_perm:[1,0,3,2]', 'quad_perm:[2,3,0,1]', 'row_half_mirror', 'row_mirror'):
            a(f'{op}_dpp {x}, {x}, {x} {m}{DPP}')
        for sw in (16, 32):
            a(f'v_mov_b32 {t}, {x}'); a(f'v_permlane{sw}_swap_b32 {t}, {x}'); a(f'{op} {x}, {x}, {t}')
    def gate():
        a(f's_cmp_lg_u32 {sW}, 3'); a('s_cbranch_scc1 Lg1'); a.begin_cond()
        a(f'v_dot2_f32_bf16 {T0}, {v(vFg)}, {v(vFg+4)}, 0')
        for r in range(1, 4): a(f'v_dot2_f32_bf16 {T0}, {v(vFg+r)}, {v(vFg+4+r)}, {T0}')
        wave_reduce('v_add_f32', T0, T1)
        a(f'v_mul_f32 {T0}, {f2u(-LOG2E):#x}, {T0}')
        a(f'v_exp_f32 {T0}, {T0}')
        a(f'v_add_f32 {T0}, 1.0, {T0}')
        a(f'v_rcp_f32 {T0}, {T0}')
        a(f'v_mov_b32 {T1}, {GG}')
        a(f'v_sub_f32 {vOmg}, 1.0, {T0}')
        a(f'v_mul_f32 {vOmg}, 0x3e000000, {vOmg}')
        a(f'ds_write_b32 {T1}, {T0}')
        a.end_cond('Lg1')
    ldfl = f'global_load_dword {v(vFlg)}, {vFLl}, {sWS} sc1'
    ldqa = [f'global_load_dwordx4 {v(vA + 4*y, 4)}, {vQAl}, {sWS} offset:{1024*y} sc1' for y in range(4)]
    side = []
    if o['fpos'] == 16: tFl = a(ldfl)
    for n in range(16, 32):
        if n == 16 + o['w0']: a.wait(tS[0]); side += sreads(0) + pvreads(0)
        if n == 24 + o['w1']:
            for l in side: a(l)
            tr0 = a.lastlg(); a.wait(tS[1]); side = sreads(1) + pvreads(1)
        ckdma(n)
        if n + 1 == o['fpos']: tFl = a(ldfl)
        if n + 1 == o['qpos']:
            if o['fpos']:
                a.wait(tFl)
                a.label('Lfl_chk')
                a(f'v_cmp_ne_u32 vcc, {sT}, {v(vFlg)}')
                a('s_cbranch_vccnz Lfl_retry')
                a.label('Lfl_ok'); retry('fl', [ldfl], limit=o['nflag'])
                a(f's_mov_b32 {sLoc}, 0')
            else: nhop[0] += 1
            tQA = [a(l.replace(' sc1', '') if o['qap'] else l) for l in ldqa]
            stamp('qaiss')
        for l in side[:4]: a(l)
        side = side[4:]
    for l in side: a(l)
    a(f'v_add_u32 {vSB}, {R[2]}, {vSB}')
    for c in range(4): a(f'v_add_u32 {v(vPV+c)}, {R[2]}, {v(vPV+c)}')
    rd2 = sreads(2) + pvreads(2)
    def ld(adr, base): return f'global_load_lds_dwordx4 {adr}, {base}{ntw}'
    uv = [(f's_mov_b32 m0, {sM8}', 's_nop 0', ld(vUV, sWUV))]
    uv += [('s_add_u32 m0, m0, 1040', f'v_add_u32 {vUV}, 8192, {vUV}', ld(vUV, sWUV))] * 3
    wo = [(f's_add_u32 m0, {sM8}, 4160', 's_nop 0', ld(vWOa, sWOp))]
    wo += [('s_add_u32 m0, m0, 1056', f'v_add_u32 {vWOa}, 8192, {vWOa}', ld(vWOa, sWOp))] * 3
    def ffw(base, adr, ptr, step):
        return [(f's_mul_i32 {t2}, {sW}, 2112', f's_add_u32 m0, {t2}, {base}', f's_mov_b64 exec, {mFFN}', ld(adr, ptr), 's_mov_b64 exec, -1'),
                ('s_add_u32 m0, m0, 1056', f'v_add_u32 {adr}, {step}, {adr}', f's_mov_b64 exec, {mFFN}', ld(adr, ptr), 's_mov_b64 exec, -1')]
    late = uv + ffw(W1, vW1a, sW1p, 22016) + wo + ffw(W2, vW2a, sW2p, 8192)
    tL = []
    def issue(n):
        for _ in range(n):
            if late:
                for l in late.pop(0): a(l)
                tL.append(a.lastvm())
    a.wait(tS[2], tr0)
    for k in range({'split': 6, 'all': 12, 'none': 0}.get(o['late'], o['late'])):
        issue(1)
        for l in rd2[:4]: a(l)
        rd2 = rd2[4:]
    for l in rd2: a(l)
    gate()
    a.wait(tS[3])
    for l in sreads(3): a(l)
    pv3 = pvreads(3)
    if o['pv3'] == 'pre':
        for l in pv3: a(l)
        pv3 = []
    a.wait(tQA[0])
    a.label('Lqa_chk')
    for y in range(4):
        a.wait(tQA[y])
        a(f'ds_write2_b32 {v(vQ2w + (y>>1))}, {v(vA + 4*y)}, {v(vA + 4*y + 2)} offset0:{160*(y&1)} offset1:{160*(y&1) + 40}')
        a(f'v_bitop3_b32 {v(vT[y])}, {v(vA + 4*y + 1)}, {v(vA + 4*y + 3)}, {sT} bitop3:0x7e')
    tq = [a(f'ds_read_b128 {v(vS + 4*k, 4)}, {vQ2r} offset:{64*k}') for k in range(2)]
    a(f'v_or3_b32 {T0}, {T0}, {T1}, {T2}')
    a(f'v_or_b32 {T0}, {T0}, {T3}')
    a(f'v_cmp_ne_u32 vcc, 0, {T0}')
    a('s_cbranch_vccnz Lqa_retry')
    a.label('Lqa_ok'); retry('qa', ldqa)
    stamp('qagot')
    per = 2 if o['late'] == 'none' else 1
    issue(2*per)

    def spost(s):
        d = vSa + 8*s; x = vB + 4*s
        return [f'v_add_f32 {v(x)}, {v(d)}, {v(d+1)}', f'v_add_f32 {v(x+2)}, {v(d+2)}, {v(d+3)}',
                f'v_add_f32 {v(x+1)}, {v(d+4)}, {v(d+5)}', f'v_add_f32 {v(x+3)}, {v(d+6)}, {v(d+7)}',
                f'ds_write_b128 {vSXw}, {v(x,4)} offset:{256*s}']
    for s in range(4):
        side = spost(s - 2) if s >= 2 else []
        for i in range(2):
            for k in range(2):
                a.wait(tq[k])
                smf(vSa + 8*s + 4*i, vS + 4*k, 128 + ((s*2 + i)*2 + k)*8)
                if side: a(side.pop(0))
                elif pv3: a(pv3.pop(0)); a(pv3.pop(0))
        for l in side: a(l)
    for l in spost(2) + spost(3): a(l)
    issue(per)
    a.wait_all(lg=True)
    a('s_barrier')
    stamp('sbar')
    tx = [a(f'ds_read_b128 {v(vA + 4*w, 4)}, {vSXr} offset:{WP*w}') for w in range(4)]
    issue(per)
    a.wait(tx[1])
    for r in range(4): a(f'v_add_f32 {v(vA + r)}, {v(vA + r)}, {v(vA + 4 + r)}')
    a.wait(tx[3])
    for r in range(4): a(f'v_add_f32 {v(vA + 8 + r)}, {v(vA + 8 + r)}, {v(vA + 12 + r)}')
    for r in range(4): a(f'v_add_f32 {v(vA + r)}, {v(vA + r)}, {v(vA + 8 + r)}')
    a(f'v_max_f32 {T0}, {v(vA)}, {v(vA+1)}')
    a(f'v_max_f32 {T1}, {v(vA+2)}, {v(vA+3)}')
    a(f'v_permlane32_swap_b32 {T0}, {T1}')
    a(f'v_max_f32 {T0}, {T0}, {T1}')
    for m in ('quad_perm:[1,0,3,2]', 'quad_perm:[2,3,0,1]', 'row_half_mirror'):
        a(f'v_max_f32_dpp {T0}, {T0}, {T0} {m}{DPP}')
    a(f'v_max_f32_dpp {T1}, {T0}, {T0} row_mirror{DPP}')
    a(f'v_max_f32_dpp {T0}, {T0}, {T0} row_mirror{DPP}')
    a(f'v_permlane16_swap_b32 {T0}, {T1}')
    a(f'v_max_f32 {T2}, {T0}, {T1}')
    a(f'v_max_f32 {T3}, {T0}, {T1}')
    a(f'v_max_f32 {v(vE)}, {T0}, {T1}')
    a(f'v_permlane32_swap_b32 {T2}, {T3}')
    for r in range(4): a(f'v_sub_f32 {v(vA + r)}, {v(vA + r)}, {T2 if r < 2 else T3}')
    for r in range(4): a(f'v_exp_f32 {v(vA + r)}, {v(vA + r)}')
    a(f'v_cvt_pk_bf16_f32 {T0}, {v(vA)}, {v(vA+1)}')
    a(f'v_cvt_pk_bf16_f32 {T1}, {v(vA+2)}, {v(vA+3)}')
    t = a(f'ds_write2_b32 {vPw}, {T0}, {T1} offset0:0 offset1:80')
    issue(per)
    a.wait(t)
    a('s_barrier')
    stamp('pbar')

    tp = [a(f'ds_read_b128 {v(vS + 4*k, 4)}, {vPr} offset:{64*k}') for k in range(2)]
    issue(12)
    L = v(vE + 1)
    a(f'v_add_f32 {L}, {v(vA)}, {v(vA+1)}')
    a(f'v_add_f32 {T1}, {v(vA+2)}, {v(vA+3)}')
    a(f'v_permlane32_swap_b32 {L}, {T1}')
    a(f'v_add_f32 {L}, {L}, {T1}')
    side = [[f'v_add_f32_dpp {L}, {L}, {L} {m}{DPP}'] for m in ('quad_perm:[1,0,3,2]', 'quad_perm:[2,3,0,1]', 'row_half_mirror')]
    side += [[f'v_add_f32_dpp {T1}, {L}, {L} row_mirror{DPP}', f'v_add_f32_dpp {L}, {L}, {L} row_mirror{DPP}'],
             [f'v_permlane16_swap_b32 {L}, {T1}'], [f'v_add_f32 {L}, {L}, {T1}'],
             ['s_mov_b32 exec_lo, 0xff', 's_mov_b32 exec_hi, 0xff', f'global_store_dwordx2 {vMLs}, {v(vE,2)}, {sWS} sc1', 's_mov_b64 exec, -1'], []]
    def opost(c):
        d = vO + 8*c
        return [[f'v_add_f32 {v(d)}, {v(d)}, {v(d+1)}', f'v_add_f32 {v(d+2)}, {v(d+2)}, {v(d+3)}'],
                [f'v_add_f32 {v(d+4)}, {v(d+4)}, {v(d+5)}'], [f'v_add_f32 {v(d+6)}, {v(d+6)}, {v(d+7)}', f'v_cvt_pk_bf16_f32 {v(vB + c)}, {v(d)}, {v(d+4)}'],
                [f'v_cvt_pk_bf16_f32 {v(vB + 4 + c)}, {v(d+2)}, {v(d+6)}']]
    side += opost(0) + opost(1)
    for c in range(4):
        for b in range(2):
            for k in range(2):
                a.wait(tp[k])
                smf(vO + 8*c + 4*b, vS + 4*k, ((c*2 + b)*2 + k)*8)
                for l in side.pop(0):
                    t = a(l)
                    if t: tMLs = t
    for grp in opost(2) + opost(3)[:3]:
        for l in grp: a(l)
    a(f'global_store_dwordx4 {vOs0}, {v(vB,4)}, {sWS} sc1')
    a(opost(3)[3][0])
    tOs = a(f'global_store_dwordx4 {vOs1}, {v(vB+4,4)}, {sWS} sc1')
    stamp('opub')

    a.wait(tL[5])
    a('s_barrier')
    tf1 = [a(f'ds_read_b64_tr_b16 {ac(aWF1 + 2*k, 2)}, {vTO2} offset:{4224*(k>>1) + 512*(k&1)}') for k in range(4)]
    for b in range(2):
        for k in range(4):
            a(f'ds_read_b64_tr_b16 {ac(aWD + 8*b + 2*k, 2)}, {vTR} offset:{WP*k + 16*b}')
    a(f'v_mov_b32 {T1}, {GG}')
    a(f'ds_read_b32 {vGate}, {T1}')
    a.wait(tf1[3])
    mfma(vS, v(vXo, 4), ac(aWF1, 4), '0')
    mfma(vS, v(vXo + 4, 4), ac(aWF1 + 4, 4), v(vS, 4))
    setexec(0xffff)
    a(f'v_mov_b32 {v(vPub)}, {v(vS)}')
    a(f'global_store_dwordx2 {vFs}, {v(vPub,2)}, {sWS} sc1')
    setexec(-1)

    vML = vE; vMr = vE + 2; vOg = vO
    ldml = [f'global_load_dwordx2 {v(vML,2)}, {vMLl}, {sWS} sc1',
            f'global_load_dword {v(vMr)}, {vMLr}, {sWS} sc1',
            f'global_load_dword {v(vMr+1)}, {vMLr}, {sWS} offset:64 sc1']
    ldo = [f'global_load_dwordx4 {v(vOg + 4*u, 4)}, {vOl}, {sWS} offset:{1024*u} sc1' for u in range(2)]
    if o['ogate'] == 'ack': a.wait(tMLs)
    elif o['ogate'] == 'ack2': a.wait(tOs)
    elif o['ogate'] != 'none': a.wait(tL[o['ogate']])
    for l in ldml: tML = a(l)
    if o['ogate'] == 'ack': a.wait(tOs)
    for l in ldo: tO = a(l)
    stamp('oiss')
    ldf = [f'global_load_dwordx4 {v(vFg + 4*y, 4)}, {vFl}, {sWS} offset:{1024*y} sc1' for y in range(4)]
    if o['loc3']: a(f'global_load_ushort {vJunk}, {vYs}, {sWS} sc1')
    a.wait(tML)
    a.label('Lml_chk')
    a(f'v_max3_u32 {T0}, {v(vML)}, {v(vML+1)}, {v(vMr)}')
    a(f'v_max_u32 {T0}, {T0}, {v(vMr+1)}')
    a(f'v_cmp_eq_u32 vcc, -1, {T0}')
    a(f'v_mov_b32 {T4}, {v(vML)}')
    a('s_cbranch_vccnz Lml_retry')
    a.label('Lml_ok'); retry('ml', ldml)
    a(f's_cmp_eq_u32 {sW}, 3'); a(f's_cselect_b64 exec, {mFFN}, 1')
    for l in ldf: tF = a(l)
    setexec(-1)
    wave_reduce('v_max_f32', T4, T1)
    for u in range(2): a(f'v_sub_f32 {v(vMr+u)}, {v(vMr+u)}, {T4}')
    for u in range(2): a(f'v_exp_f32 {v(vMr+u)}, {v(vMr+u)}')
    a(f'v_sub_f32 {T5}, {v(vML)}, {T4}')
    for u in range(2): a(f'v_cvt_pk_bf16_f32 {v(vMr+u)}, {v(vMr+u)}, {v(vMr+u)}')
    a(f'v_exp_f32 {T5}, {T5}')
    for u in range(2):
        for d in range(4): a(f'v_and_b32 {v(vA + 4*u + d)}, {v(vMr+u)}, {v(vMask+d)}')
    a(f'v_cvt_pk_bf16_f32 {T5}, {v(vZero)}, {T5}')
    a.wait(tO)
    a.label('Lo_chk')
    mfma(vS, v(vA, 4), v(vOg, 4), '0')
    mfma(vS, v(vA + 4, 4), v(vOg + 4, 4), v(vS, 4))
    a(f'v_max3_u32 {T0}, {v(vOg)}, {v(vOg+1)}, {v(vOg+2)}')
    a(f'v_max3_u32 {T1}, {v(vOg+3)}, {v(vOg+4)}, {v(vOg+5)}')
    a(f'v_max3_u32 {T0}, {T0}, {v(vOg+6)}, {v(vOg+7)}')
    a(f'v_max_u32 {T0}, {T0}, {T1}')
    a(f'v_cmp_eq_u32 vcc, -1, {T0}')
    a('s_cbranch_vccnz Lo_retry')
    a.label('Lo_ok'); retry('o', ldo)
    a(f'v_mul_f32 {T6}, {T5}, {v(vML+1)}')
    setexec(mCX)
    a(f'v_cvt_pk_bf16_f32 {v(vS+4)}, {v(vS)}, {v(vS+1)}')
    a(f'v_cvt_pk_bf16_f32 {v(vS+5)}, {v(vS+2)}, {v(vS+3)}')
    a(f'ds_write_b64 {vCXw}, {v(vS+4,2)}')
    setexec(-1)
    for m in ('quad_perm:[1,0,3,2]', 'quad_perm:[2,3,0,1]', 'row_half_mirror', 'row_mirror'):
        a(f'v_add_f32_dpp {T6}, {T6}, {T6} {m}{DPP}')
    a.wait_all(lg=True)
    a('s_barrier')
    stamp('ogot')

    tc = [a(f'ds_read_b128 {v(vA + 4*ks, 4)}, {vCXr} offset:{64*ks}') for ks in range(2)]
    for sw in (16, 32):
        a(f'v_mov_b32 {T1}, {T6}'); a(f'v_permlane{sw}_swap_b32 {T1}, {T6}'); a(f'v_add_f32 {T6}, {T6}, {T1}')
    a(f'v_rcp_f32 {T6}, {T6}')
    for ks in range(2):
        a.wait(tc[ks])
        for b in range(2):
            mfma(vS + 4*b, v(vA + 4*ks, 4), ac(aWD + 8*b + 4*ks, 4), v(vS + 4*b, 4) if ks else '0')
    rdw = [f'ds_read_b64_tr_b16 {ac(aWF2 + 2*k, 2)}, {vTO2} offset:{WP + 4224*(k>>1) + 512*(k&1)}' for k in range(4)]
    rdw += [f'ds_read_b64_tr_b16 {ac(aWE + 2*k, 2)}, {vTO} offset:{4160 + WP*(k>>1) + 512*(k&1)}' for k in range(8)]
    a(f'v_mul_f32 {T6}, {T6}, {vGate}')
    for l in rdw[:6]: a(l)
    a(f'v_add_f32 {T0}, {v(vS)}, {v(vS+1)}')
    a(f'v_add_f32 {T1}, {v(vS+2)}, {v(vS+3)}')
    a(f'v_add_f32 {T2}, {v(vS+4)}, {v(vS+5)}')
    a(f'v_add_f32 {T3}, {v(vS+6)}, {v(vS+7)}')
    a(f'v_add_f32 {T0}, {T0}, {T1}')
    a(f'v_add_f32 {T2}, {T2}, {T3}')
    for l in rdw[6:8]: a(l)
    a(f'v_permlane16_swap_b32 {T0}, {T2}')
    a(f'v_add_f32 {T0}, {T0}, {T2}')
    a(f'v_mul_f32 {T1}, {T0}, {T6}')
    a(rdw[8])
    a(f'v_mul_f32_dpp {T2}, {T0}, {T6} quad_perm:[1,1,3,3]{DPP}')
    setexec(0x55555555)
    a(f'v_cvt_pk_bf16_f32 {vYv}, {T1}, {T2}')
    sty_far = f'global_store_dword {vYs}, {vYv}, {sWS} offset:-2048 sc1'
    tY = a(f'global_store_dword {vYs}, {vYv}, {sWS}' if o['loc3'] else sty_far)
    setexec(-1)
    stamp('ypub')
    for l in rdw[9:]: a(l)
    ldy = [f'global_load_dwordx4 {v(vA + 4*ks, 4)}, {vYl}, {sWS} offset:{512*ks} sc1' for ks in range(4)]
    ldy_far = [f'global_load_dwordx4 {v(vA + 4*ks, 4)}, {vYl}, {sWS} offset:{512*ks - 2048} sc1' for ks in range(4)]
    if o['loc3']:
        a.wait(tY)
        ty = [a(l) for l in ldy]

    a(f'v_mov_b64 {v(vE,2)}, 0'); a(f'v_mov_b64 {v(vE+2,2)}, 0')
    a(f's_cmp_ge_u32 {sFG}, 22'); a('s_cbranch_scc1 Lnf'); a.begin_cond()
    a(f's_cmp_lg_u32 {sW}, 3'); a('s_cbranch_scc1 Lf1'); a.begin_cond()
    a.wait(tF)
    a.label('Lf_chk')
    for y in range(4): a(f'v_bitop3_b32 {v(vT[y])}, {v(vFg + 4*y + 1)}, {v(vFg + 4*y + 3)}, {sT} bitop3:0x7e')
    a(f'v_or3_b32 {T0}, {T0}, {T1}, {T2}')
    a(f'v_or_b32 {T0}, {T0}, {T3}')
    a(f'v_cmp_ne_u32 vcc, 0, {T0}')
    a('s_cbranch_vccnz Lf_retry')
    a.label('Lf_ok'); retry('f', ldf)
    for k in range(2):
        a(f'v_add_f32 {v(vT[k])}, {v(vFg + 2*k)}, {v(vFg + 4 + 2*k)}')
        a(f'v_add_f32 {v(vT[2+k])}, {v(vFg + 8 + 2*k)}, {v(vFg + 12 + 2*k)}')
    a(f'v_add_f32 {T0}, {T0}, {T2}')
    a(f'v_add_f32 {T1}, {T1}, {T3}')
    a(f'v_permlane32_swap_b32 {T0}, {T1}')
    a(f'v_add_f32 {T0}, {T0}, {T1}')
    a(f'v_mul_f32 {T1}, {f2u(-LOG2E):#x}, {T0}')
    a(f'v_exp_f32 {T1}, {T1}')
    a(f'v_mul_f32 {T0}, {T0}, {vOmg}')
    a(f'v_add_f32 {T1}, 1.0, {T1}')
    a(f'v_rcp_f32 {T1}, {T1}')
    a(f'v_cndmask_b32 {T0}, {T0}, {v(vZero)}, {mFZ}')
    a(f'v_mul_f32 {T0}, {T0}, {T1}')
    a(f'v_cvt_pk_bf16_f32 {T0}, {T0}, {T0}')
    a(f'ds_write_b16 {vHw}, {T0}')
    a.wait_all(lg=True)
    a.end_cond('Lf1')
    a('s_barrier')
    th = [a(f'ds_read_b128 {v(vB + 4*ks, 4)}, {vHr} offset:{64*ks}') for ks in range(2)]
    for ks in range(2):
        a.wait(th[ks])
        mfma(vE, v(vB + 4*ks, 4), ac(aWF2 + 4*ks, 4), v(vE, 4) if ks else '0')
    a.end_cond('Lnf')

    if not o['loc3']:
        a.wait_all(vm=True)
        ty = [a(l) for l in ldy_far]
    a.wait_all(lg=True)
    a.wait(ty[0])
    a.label('Ly_chk')
    for ks in range(4):
        a.wait(ty[ks])
        mfma(vS, v(vA + 4*ks, 4), ac(aWE + 4*ks, 4), v(vS, 4) if ks else v(vE, 4))
        a(f'v_max3_u32 {v(vT[ks])}, {v(vA + 4*ks)}, {v(vA + 4*ks + 1)}, {v(vA + 4*ks + 2)}')
    a(f'v_max3_u32 {T0}, {T0}, {v(vA+3)}, {v(vA+7)}')
    a(f'v_max3_u32 {T1}, {T1}, {v(vA+11)}, {v(vA+15)}')
    a(f'v_max3_u32 {T0}, {T0}, {T1}, {T2}')
    a(f'v_max_u32 {T0}, {T0}, {T3}')
    a(f'v_cmp_eq_u32 vcc, -1, {T0}')
    a('s_cbranch_vccnz Ly_retry')
    a.label('Ly_ok')
    puby = ['s_mov_b64 exec, 0x55555555', sty_far, 's_mov_b64 exec, -1']
    if o['loc3']: retry('y', ldy, (o['nloc'], puby, ldy_far))
    else: retry('y', ldy_far)
    a(f'v_add_f32 {T0}, {v(vS)}, {v(vS+1)}')
    a(f'v_add_f32 {T1}, {v(vS+2)}, {v(vS+3)}')
    a(f'v_add_f32 {T2}, {T0}, {T1}')
    a(f'v_add_f32 {T0}, {T0}, {T1}')
    a(f's_lshl2_add_u32 {t3}, {sJ}, {sW}')
    a(f'v_permlane16_swap_b32 {T0}, {T2}')
    setexec(0xffff)
    a(f'v_add_f32 {T0}, {T0}, {T2}')
    a(f'global_store_dword {vRs}, {T0}, {sWS} sc1')
    if o['loc3']:
        for l in puby[:2]: a(l)
    setexec(-1)
    stamp('rpub')

    a(f's_cmp_lg_u32 {t3}, {sH}'); a('s_cbranch_scc1 Lfin'); a.begin_cond()
    ldr = [f'global_atomic_or_x2 {v(vB + 2*y, 2)}, {vRl}, {v(vZero,2)}, {sWS} offset:{512*y} sc0 sc1' for y in range(4)]
    for l in ldr: a(l)
    a.wait_all(vm=True)
    a.label('Lr_chk')
    a(f'v_max3_u32 {T2}, {v(vB)}, {v(vB+1)}, {v(vB+2)}')
    a(f'v_max3_u32 {T3}, {v(vB+3)}, {v(vB+4)}, {v(vB+5)}')
    a(f'v_max3_u32 {T2}, {T2}, {v(vB+6)}, {v(vB+7)}')
    a(f'v_max_u32 {T2}, {T2}, {T3}')
    a(f'v_cmp_eq_u32 vcc, -1, {T2}')
    a(f'v_add_f32 {T0}, {v(vB)}, {v(vB+2)}')
    a('s_cbranch_vccnz Lr_retry')
    a.label('Lr_ok'); retry('r', ldr)
    a(f'v_add_f32 {T1}, {v(vB+1)}, {v(vB+3)}')
    a(f'v_add_f32 {T2}, {v(vB+4)}, {v(vB+6)}')
    a(f'v_add_f32 {T3}, {v(vB+5)}, {v(vB+7)}')
    a(f'v_add_f32 {T0}, {T0}, {T2}')
    a(f'v_add_f32 {T1}, {T1}, {T3}')
    a(f'v_permlane32_swap_b32 {T0}, {T1}')
    a(f'v_add_f32 {T0}, {T0}, {T1}')
    a(f'v_add_f32_dpp {T1}, {T0}, {T0} row_ror:8{DPP}')
    a(f'v_add_f32_dpp {T0}, {T0}, {T0} row_ror:8{DPP}')
    a(f'v_permlane16_swap_b32 {T0}, {T1}')
    a('s_mov_b32 exec_lo, 0xff'); a('s_mov_b32 exec_hi, 0xff')
    a(f'v_add_f32 {T0}, {T0}, {T1}')
    a(f'v_cvt_pk_bf16_f32 {T0}, {T0}, {T0}')
    a(f'global_store_short {vOut}, {T0}, {sOUT}')
    a(f's_cmp_lg_u32 {t3}, 0'); a('s_cbranch_scc1 Lfin')
    setexec(1)
    a(f'global_store_dword {v(vZero)}, {v(vPub+1)}, {sWS} sc1')
    a.end_cond('Lfin')
    stamp('end')
    if o['probe']:
        a('s_waitcnt lgkmcnt(0)')
        a.label('Lprobe')
        a('s_memrealtime s[72:73]'); a('s_waitcnt lgkmcnt(0)'); a('s_sub_u32 s72, s72, s70'); a('s_cmp_lt_u32 s72, 3000'); a('s_cbranch_scc1 Lprobe')
    if want:
        setexec(1)
        a('s_waitcnt lgkmcnt(0)')
        a(f's_lshl2_add_u32 {t2}, s2, {sW}'); a(f's_lshl_b32 {t2}, {t2}, 7'); a(f's_add_u32 {t2}, {t2}, {STAMP}')
        a(f'v_mov_b32 {T0}, {t2}')
        for k in range(len(names)):
            a(f'v_mov_b32 {T1}, s{STAMP0 + 2*k}')
            a(f'global_store_dword {T0}, {T1}, {sWS} offset:{4*k}')
        a(f'v_mov_b32 {T1}, {sCnt}')
        a(f'global_store_dword {T0}, {T1}, {sWS} offset:124')
    a.label('Lend')
    a('s_endpgm')
    a.tail.append('Lcode_end:')
    hdr = ''.join(l for l in open(f'cdna_kernels/{NAME}.s.ref').readlines()[:16])
    extra = f'; stamps={",".join(names)}\n; opts={kw}\n' if want else ''
    return f"""{hdr}{extra}; @launch grid=(256,1,1) block=(256,1,1) lds={LDS}
.amdgcn_target "amdgcn-amd-amdhsa--gfx950"
.text
.globl {NAME}_kernel
.p2align 8
.type {NAME}_kernel,@function
{NAME}_kernel:
{a.text()}
.section .rodata,"a"
.p2align 6
.amdhsa_kernel {NAME}_kernel
  .amdhsa_next_free_vgpr 512
  .amdhsa_next_free_sgpr 102
  .amdhsa_accum_offset 256
  .amdhsa_group_segment_fixed_size 0
  .amdhsa_kernarg_size 104
  .amdhsa_user_sgpr_count 2
  .amdhsa_user_sgpr_kernarg_segment_ptr 1
  .amdhsa_system_sgpr_workgroup_id_x 1
.end_amdhsa_kernel
""", nv[0], a.pads

if __name__ == '__main__':
    kw = {}
    for x in sys.argv[2:]:
        k, val = x.split('=')
        assert k in DEF, k
        kw[k] = int(val) if val.lstrip('-').isdigit() else val
    txt, nvg, pads = gen(**kw)
    open(sys.argv[1], 'w').write(txt)
    print(sys.argv[1], 'vgprs', nvg, 'pads', pads)
```
